```python
import torch

def _softmax(x, axis=-1):
    return torch.softmax(x, dim=axis)
def _gelu(x):
    return torch.nn.functional.gelu(x, approximate="tanh")
def _silu(x):
    return torch.nn.functional.silu(x)
def _sigmoid(x):
    return torch.sigmoid(x)
def _layernorm(x, axis=-1, eps=1e-5):
    m = x.mean(dim=axis, keepdim=True)
    v = x.var(dim=axis, keepdim=True, unbiased=False)
    return (x - m) / torch.sqrt(v + eps)
def _scatter_add(tgt, idx, src, axis=0):
    return tgt.clone().index_add_(axis, idx, src)
def _segment_sum(src, seg, n):
    out = torch.zeros((n,) + src.shape[1:], dtype=src.dtype)
    return out.index_add_(0, seg, src)
def _pad(x, pw):
    flat = tuple(v for pair in reversed(pw) for v in pair)
    return torch.nn.functional.pad(x, flat)

kernel_name = 'recurrent_scan__sliding_block_cached__glu_gated_reglu__decode'

def setup_inputs():

    _w = (lambda a: (lambda t: t.to(torch.bfloat16) if t.is_floating_point() else t)(torch.as_tensor(a)))
    def _A_setup():
        B, Sq, D = 8, 1, 512
        Hq, Hkv, Sk, Dh = 32, 8, 4096, 128
        assert Hq % Hkv == 0, (Hq, Hkv)
        return {
            "x": _w((lambda *s: torch.randn(*s, dtype=torch.bfloat16) * 0.05)(B, Sq, D)),
            "k_cache": _w((lambda *s: torch.randn(*s, dtype=torch.bfloat16) * 1.6)(B, Hkv, Sk, Dh)),
            "v_cache": _w((lambda *s: torch.randn(*s, dtype=torch.bfloat16) * 1.6)(B, Hkv, Sk, Dh)),
            "wq": _w((lambda *s: torch.randn(*s, dtype=torch.bfloat16) * 1.6)(D, Hq * Dh) * (D ** -0.5)),
            "wo": _w((lambda *s: torch.randn(*s, dtype=torch.bfloat16) * 1.6)(Hq * Dh, D) * ((Hq * Dh) ** -0.5)),
        }
    _A_in = _A_setup()

    def _B_setup():
        B, S, D, F = 8, 1, 512, 1792
        return {
            "x": _w((lambda *s: torch.randn(*s, dtype=torch.bfloat16) * 0.05)(B, S, D)),
            "W_gate": _w((lambda *s: torch.randn(*s, dtype=torch.bfloat16) * 0.2)(D, F) * (2.0 / D) ** 0.5),
            "W_up": _w((lambda *s: torch.randn(*s, dtype=torch.bfloat16) * 0.2)(D, F) * (2.0 / D) ** 0.5),
            "W_down": _w((lambda *s: torch.randn(*s, dtype=torch.bfloat16) * 0.2)(F, D) * (1.0 / F) ** 0.5),
        }
    _B_in = _B_setup()

    return {
        "A_x": _A_in["x"],
        "A_k_cache": _A_in["k_cache"],
        "A_v_cache": _A_in["v_cache"],
        "A_wq": _A_in["wq"],
        "A_wo": _A_in["wo"],
        "B_x": _B_in["x"],
        "B_W_gate": _B_in["W_gate"],
        "B_W_up": _B_in["W_up"],
        "B_W_down": _B_in["W_down"],
    }

def reference(A_x, A_k_cache, A_v_cache, A_wq, A_wo, B_x, B_W_gate, B_W_up, B_W_down):
    def _A_ref(x, k_cache, v_cache, wq, wo):
        B, Sq, D = x.shape
        Hq, Dh = 32, 128
        Hkv, Sk = k_cache.shape[1], k_cache.shape[2]
        W = min(4096, max(256, Sk // 4))
        rep = Hq // Hkv
        q = (lambda x, *d: x.permute(*d))((x @ wq).reshape(B, Sq, Hq, Dh), 0, 2, 1, 3)
        k = (lambda x, n, axis: torch.repeat_interleave(x, n, dim=axis))(k_cache[:, :, Sk - W:, :], rep, axis=1)
        v = (lambda x, n, axis: torch.repeat_interleave(x, n, dim=axis))(v_cache[:, :, Sk - W:, :], rep, axis=1)
        scores = torch.einsum("bhqd,bhkd->bhqk", q, k) * (Dh ** -0.5)
        p = _softmax(scores, axis=-1)
        o = torch.einsum("bhqk,bhkd->bhqd", p, v)
        return (lambda x, *d: x.permute(*d))(o, 0, 2, 1, 3).reshape(B, Sq, Hq * Dh) @ wo

    def _B_ref(x, W_gate, W_up, W_down):
        gate = torch.einsum("bsd,df->bsf", x, W_gate)
        up = torch.einsum("bsd,df->bsf", x, W_up)
        gate = gate * (lambda x, dt: x.to(dt))(gate > 0, gate.dtype)
        h = gate * up
        return torch.einsum("bsf,fd->bsd", h, W_down)

    x = A_x
    xn = _layernorm(x, axis=-1)
    s = _A_ref(xn, A_k_cache, A_v_cache, A_wq, A_wo)
    g = _silu(_B_ref(xn, B_W_gate, B_W_up, B_W_down))
    return x + s * g
```

```python
import re
TRANS = ("v_exp_f32","v_log_f32","v_rcp_f32","v_rsq_f32","v_sqrt_f32","v_sin_f32","v_cos_f32")
def regs(tok, kind):
    tok = tok.strip().lstrip("-")
    m = re.fullmatch(kind + r"(\d+)", tok)
    if m: return [int(m.group(1))]
    m = re.fullmatch(kind + r"\[(\d+):(\d+)\]", tok)
    if m: return list(range(int(m.group(1)), int(m.group(2)) + 1))
    if kind == "s" and tok == "vcc": return [106, 107]
    if kind == "s" and tok == "exec": return [126, 127]
    return []
def pad_hazards(lines):
    out = []; pos = 0
    vw = {}; sw = {}; mc = {}; st = {}
    for ln in lines:
        t = ln.split(";")[0].strip()
        if not t or t.endswith(":") or t.startswith("."):
            out.append(ln); continue
        p = t.split(None, 1); op = p[0]
        ops = [x.split()[0] if x.split() else "" for x in p[1].split(",")] if len(p) > 1 else []
        need = 0
        def req(d, r, kinds, n):
            nonlocal need
            if r in d and d[r][0] in kinds: need = max(need, n - (pos - d[r][1] - 1))
        isv = op.startswith("v_"); mf = op.startswith("v_mfma"); mem = op.startswith(("buffer_", "global_", "ds_"))
        dpp = "_dpp" in op or "row_" in t or "quad_perm" in t; perml = op.startswith("v_permlane")
        rl = op.startswith(("v_readlane", "v_readfirstlane"))
        cmp_ = op.startswith("v_cmp")
        if isv:
            if rl or cmp_: vd = []; sd = regs(ops[0], "s"); srcs = ops[1:]
            elif perml: vd = regs(ops[0], "v") + regs(ops[1], "v"); sd = []; srcs = ops
            else: vd = regs(ops[0], "v"); sd = []; srcs = ops[1:]
            if op.startswith(("v_fmac", "v_mov_b32_dpp")) or dpp: srcs = ops
            if "_co_" in op: sd = regs(ops[1], "s"); srcs = ops[2:]
            vs = [r for x in srcs for r in regs(x, "v")]; ss = [r for x in srcs for r in regs(x, "s")]
            for r in vs:
                if mf:
                    req(vw, r, ("valu", "trans"), 2)
                    isC = r in regs(ops[3], "v") and ops[3] == ops[0]
                    if not isC: req(vw, r, ("mfma",), 8)
                else:
                    req(vw, r, ("mfma",), 8)
                    if not op.startswith(TRANS): req(vw, r, ("trans",), 1)
                    if dpp or perml: req(vw, r, ("valu", "trans"), 2)
                    if rl: req(vw, r, ("valu", "trans"), 1)
            for r in vd:
                if not mf: req(vw, r, ("mfma",), 8); req(mc, r, ("c",), 3); req(st, r, ("st",), 2)
                elif not (ops[3] == ops[0]): req(vw, r, ("mfma",), 8)
            for r in ss: req(sw, r, ("valu",), 2)
        elif mem:
            allv = [r for x in ops for r in regs(x, "v")]
            for r in allv: req(vw, r, ("mfma",), 8)
            for x in ops:
                for r in regs(x, "s"): req(sw, r, ("valu",), 5)
            vd = []; sd = []
        if need > 0:
            out.append(f"s_nop {need-1}"); pos += need
        out.append(ln)
        if isv:
            k = "mfma" if mf else ("trans" if op.startswith(TRANS) else "valu")
            for r in vd: vw[r] = (k, pos)
            for r in sd: sw[r] = ("valu", pos)
            if mf:
                for r in regs(ops[3], "v"): mc[r] = ("c", pos)
        elif mem and "store" in op and ("x4" in op or "x3" in op):
            for x in ops:
                for r in regs(x, "v"): st[r] = ("st", pos)
        elif op.startswith("s_") and ops and not op.startswith(("s_cmp", "s_cbranch", "s_waitcnt", "s_nop")):
            for r in regs(ops[0], "s"): sw.pop(r, None)
        pos += (int(ops[0]) + 1) if op == "s_nop" else 1
    return out
```

```python
import sys
sys.path.insert(0, "work")
from asmlib import pad_hazards
NAME = "recurrent_scan__sliding_block_cached__glu_gated_reglu__decode"
HDR = open(f"cdna_kernels/{NAME}.s.ref").read().split("; Override launch")[0]
WS_Q, WS_GU, WS_O, WS_LSE, WS_F = 0x10000, 0x100000, 0x200000, 0x300000, 0x400000
L_CNT, L_MX, L_LS, L_QL, L_HL, L_XN, L_R1, L_RO, L_R3, L_RD = 0, 128, 256, 512, 1664, 2944, 11264, 19456, 35840, 44032
LDS_SIZE = 48128
LOG2E = 0x3fb8aa3b; SCALE = 0x3db504f3
def gen(stamps=False, nt_w=" nt", nt_kv=" nt", nv=80, pf=False, dry=True, sl1=8, sl2=2, sl3=1, d1=0, sent=True, st_o=" sc1"):
    L = []
    def e(s):
        for x in s.split("\n"): L.append(x)
    def stamp(i):
        if stamps: e(f"s_memrealtime s[{70+2*i}:{71+2*i}]")
    def flush(lo, hi):
        if not stamps: return
        e("s_waitcnt lgkmcnt(0)\ns_mov_b64 exec, 1\ns_lshl_b32 s60, s2, 7\ns_add_u32 s60, s60, 0x8000000\nv_mov_b32 v2, 0")
        for i in range(lo, hi):
            e(f"v_mov_b32 v4, s{70+2*(i-lo)}\nv_mov_b32 v5, s{71+2*(i-lo)}\nbuffer_store_dwordx2 v[4:5], v2, s[44:47], s60 offen offset:{8*i}")
    def srd(d, p, n): e(f"s_mov_b32 s{d}, s{p}\ns_mov_b32 s{d+1}, s{p+1}\ns_mov_b32 s{d+2}, {n}\ns_mov_b32 s{d+3}, 0x20000")
    def red_swap(op, v, t, which):
        for w in which: e(f"v_mov_b32 v{t}, v{v}\nv_permlane{w}_swap_b32 v{v}, v{t}\n{op} v{v}, v{v}, v{t}")
    def rb(v): e(f"v_cvt_pk_bf16_f32 v{v}, v{v}, v{v}\nv_and_b32 v{v}, 0xffff0000, v{v}")
    def lds_sync(cnt, lab, va, vt):
        e(f"s_waitcnt lgkmcnt(0)\nv_mov_b32 v{va}, 0\nv_mov_b32 v{vt}, 1\ns_mov_b64 exec, 1\nds_add_u32 v{va}, v{vt} offset:{cnt}\ns_mov_b64 exec, -1")
        e(f"{lab}:\nds_read_b32 v{vt}, v{va} offset:{cnt}\ns_waitcnt lgkmcnt(0)\nv_readfirstlane_b32 s60, v{vt}\ns_cmp_lt_u32 s60, 4\ns_cbranch_scc1 {lab}")
    def poll(lab, loads, tags, acc, sl, first=True):
        if first:
            e(f"s_cbranch_execz {lab}c"); loads()
        e(f"s_branch {lab}c\n{lab}r:\ns_mov_b64 exec, vcc\ns_sub_u32 s61, s61, 1\ns_cmp_lt_i32 s61, 0\ns_cbranch_scc1 {lab}k")
        if sl: e(f"s_sleep {sl}")
        loads()
        e(f"{lab}c:\ns_waitcnt vmcnt(0)\nv_xor_b32 v{acc}, s32, v{tags[0]}")
        for t in tags[1:]: e(f"v_bitop3_b32 v{acc}, v{acc}, v{t}, s32 bitop3:0xf6")
        e(f"v_cmp_ne_u32 vcc, 0, v{acc}\ns_cbranch_vccnz {lab}r\n{lab}k:\ns_mov_b64 exec, s[92:93]")
    def transpose(dst, src, rw, n, fs=4, n0=0):
        for j in range(2*rw):
            e(f"v_perm_b32 v{dst+fs*j+n-n0}, v{src+rw*(2*n+1)+(j>>1)}, v{src+rw*(2*n)+(j>>1)}, s{64+(j&1)}")
    def mfma(d, a, b, c): e(f"v_mfma_f32_16x16x32_bf16 v[{d}:{d+3}], v[{a}:{a+3}], v[{b}:{b+3}], " + ("0" if c is None else f"v[{c}:{c+3}]"))
    def mfma16(d, a, b, c): e(f"v_mfma_f32_16x16x16_bf16 v[{d}:{d+3}], v[{a}:{a+1}], v[{b}:{b+1}], " + ("0" if c is None else f"v[{c}:{c+3}]"))
    def skip(lab, code):
        e(f"s_cbranch_execz {lab}"); e(code); e(f"{lab}:")

    e(f"; @launch grid=(256,1,1) block=(768,1,1) lds={LDS_SIZE}")
    e('.amdgcn_target "amdgcn-amd-amdhsa--gfx950"\n.text')
    e(f".globl {NAME}_kernel\n.p2align 8\n.type {NAME}_kernel,@function\n{NAME}_kernel:")
    stamp(0)
    e("s_cmp_ge_u32 s2, 256\ns_cbranch_scc1 L_end")
    e("s_load_dwordx16 s[8:23], s[0:1], 0\ns_load_dwordx8 s[24:31], s[0:1], 64")
    if pf:
        e("s_getpc_b64 s[56:57]\nL_pc:\ns_mov_b32 s58, L_codeend-L_pc\ns_mov_b32 s59, 0x20000\nv_lshlrev_b32 v2, 6, v0\nv_cmp_gt_u32 vcc, 128, v0\ns_cbranch_vccz L_nopf")
        e("buffer_load_dword v79, v2, s[56:59], 0 offen\nL_nopf:")
    e("v_lshrrev_b32 v2, 6, v0\nv_and_b32 v1, 63, v0\nv_readfirstlane_b32 s3, v2")
    e("s_and_b32 s4, s2, 7\ns_lshr_b32 s5, s2, 3\ns_lshr_b32 s6, s5, 2\ns_and_b32 s7, s5, 3")
    e("s_mov_b32 s64, 0x05040100\ns_mov_b32 s65, 0x07060302\ns_mov_b32 s61, 20000\ns_mov_b64 s[92:93], -1")
    e("v_and_b32 v6, 15, v1\nv_lshrrev_b32 v7, 4, v1")
    e("s_cmp_ge_u32 s3, 4\ns_cbranch_scc1 L_A")
    e("s_setprio 3")
    W = 24
    e("v_mov_b32 v2, 0\nv_mov_b32 v3, 0\nds_write_b64 v2, v[2:3]")
    e("v_lshlrev_b32 v8, 5, v1\ns_lshl_b32 s33, s3, 11")
    e("v_and_b32 v5, 3, v1\nv_lshlrev_b32 v5, 9, v5\nv_lshrrev_b32 v11, 2, v1\nv_lshl_add_u32 v5, v11, 4, v5")
    e("s_lshr_b32 s60, s3, 1\ns_lshl_b32 s60, s60, 8\ns_and_b32 s62, s3, 1\ns_lshl_b32 s62, s62, 3\ns_add_u32 s60, s60, s62\nv_add_u32 v5, s60, v5")
    e("s_cmp_ge_u32 s5, 30\ns_cbranch_scc1 L_S_nop1")
    e("s_cmp_ge_u32 s5, 16\ns_cbranch_scc1 L_S_ffn")
    e("s_mov_b32 s34, 8192\ns_lshr_b32 s60, s5, 1\ns_lshl_b32 s35, s4, 3\ns_add_u32 s35, s35, s60\ns_and_b32 s62, s5, 1")
    e(f"s_lshl_b32 s66, s4, 16\ns_lshl_b32 s67, s62, 12\ns_add_u32 s66, s66, s67\ns_lshl_b32 s67, s60, 9\ns_add_u32 s66, s66, s67\ns_add_u32 s66, s66, {WS_Q}\ns_mov_b32 s67, 8192")
    e("s_waitcnt lgkmcnt(0)")
    srd(36, 14, 0x400000)
    e("s_branch L_S_p1")
    e("L_S_ffn:")
    e("s_mov_b32 s34, 3584\ns_mul_i32 s60, s4, 14\ns_add_u32 s60, s60, s5\ns_sub_u32 s60, s60, 16")
    e("s_lshr_b32 s35, s60, 2\ns_lshr_b32 s62, s60, 1\ns_and_b32 s62, s62, 1\ns_and_b32 s63, s60, 1")
    e(f"s_lshl_b32 s66, s63, 1\ns_add_u32 s66, s66, s62\ns_mul_i32 s66, s66, 14336\ns_lshl_b32 s67, s35, 9\ns_add_u32 s66, s66, s67\ns_add_u32 s66, s66, {WS_GU}\ns_mov_b32 s67, 57344")
    e("s_waitcnt lgkmcnt(0)")
    e("s_cmp_eq_u32 s63, 0\ns_cselect_b32 s36, s20, s22\ns_cselect_b32 s37, s21, s23\ns_mov_b32 s38, 0x1c0000\ns_mov_b32 s39, 0x20000")
    e("L_S_p1:")
    srd(40, 8, 8192)
    e("buffer_load_dwordx4 v[16:19], v8, s[40:43], s33 offen\nbuffer_load_dwordx4 v[20:23], v8, s[40:43], s33 offen offset:16")
    e("s_lshl_b32 s60, s34, 3\nv_mul_lo_u32 v9, v7, s60\nv_lshl_add_u32 v9, v6, 3, v9")
    e("s_lshl_b32 s63, s62, 2\ns_add_u32 s63, s63, s3\ns_lshl_b32 s68, s63, 6\ns_mul_i32 s68, s68, s34\ns_lshl_b32 s35, s35, 7\ns_add_u32 s68, s68, s35\ns_mul_i32 s69, s34, 25")
    e("s_barrier")
    for st in range(2):
        for i in range(8):
            r = W + 16*st + 2*i
            e(f"buffer_load_dwordx2 v[{r}:{r+1}], v9, s[36:39], s68 offen{nt_w}")
            if i < 7: e("s_add_u32 s68, s68, s34")
        if st == 0: e("s_add_u32 s68, s68, s69")
    e("s_load_dword s32, s[30:31], 0")
    srd(44, 30, 0x10000000)
    stamp(1)
    e("s_waitcnt vmcnt(16)")
    X = 56
    for k in range(8): e(f"v_lshlrev_b32 v{X+2*k}, 16, v{16+k}\nv_and_b32 v{X+2*k+1}, 0xffff0000, v{16+k}")
    def red32(v, t):
        for r in (8, 4, 2, 1): e(f"v_add_f32_dpp v{v}, v{v}, v{v} row_ror:{r} row_mask:0xf bank_mask:0xf")
        red_swap("v_add_f32", v, t, [16])
    e(f"v_add_f32 v10, v{X}, v{X+1}\nv_add_f32 v11, v{X+2}, v{X+3}")
    for k in range(4, 16, 2): e(f"v_add_f32 v10, v10, v{X+k}\nv_add_f32 v11, v11, v{X+k+1}")
    e("v_add_f32 v10, v10, v11"); red32(10, 11)
    e("v_mul_f32 v10, 0x3b000000, v10\nv_mov_b32 v12, 0\nv_mov_b32 v13, 0")
    for k in range(0, 16, 2): e(f"v_sub_f32 v14, v{X+k}, v10\nv_sub_f32 v15, v{X+k+1}, v10\nv_fmac_f32 v12, v14, v14\nv_fmac_f32 v13, v15, v15")
    e("v_add_f32 v12, v12, v13"); red32(12, 13)
    e("v_mul_f32 v12, 0x3b000000, v12"); rb(12); rb(10)
    e("v_add_f32 v12, 0x3727c5ac, v12"); rb(12)
    e("v_sqrt_f32 v12, v12"); rb(12)
    e("v_rcp_f32 v12, v12")
    for k in range(8):
        a, b = X+2*k, X+2*k+1
        e(f"v_sub_f32 v{a}, v{a}, v10\nv_sub_f32 v{b}, v{b}, v10\nv_cvt_pk_bf16_f32 v{b}, v{a}, v{b}\nv_lshlrev_b32 v{a}, 16, v{b}\nv_and_b32 v{b}, 0xffff0000, v{b}")
        e(f"v_mul_f32 v{a}, v{a}, v12\nv_mul_f32 v{b}, v{b}, v12\nv_cvt_pk_bf16_f32 v{16+k}, v{a}, v{b}")
    e("v_lshrrev_b32 v10, 5, v1\nv_lshl_add_u32 v10, v10, 4, v8\ns_mul_i32 s60, s3, 2080\nv_add_u32 v10, s60, v10")
    e(f"ds_write_b128 v10, v[16:19] offset:{L_XN}\nds_write_b128 v10, v[20:23] offset:{L_XN+16}")
    e("v_and_b32 v10, 7, v1\nv_mul_u32_u24 v10, 1040, v10\nv_lshl_add_u32 v10, v7, 4, v10\ns_lshl_b32 s60, s63, 7\nv_add_u32 v10, s60, v10")
    lds_sync(L_CNT, "L_sync0", 11, 12)
    e(f"ds_read_b128 v[16:19], v10 offset:{L_XN}\nds_read_b128 v[20:23], v10 offset:{L_XN+64}")
    stamp(2)
    B = 56; ACC = 24
    for st in range(2):
        e(f"s_waitcnt vmcnt({8-8*st})")
        for n in range(4): transpose(B, W+16*st, 2, n)
        if st == 0: e("s_waitcnt lgkmcnt(0)")
        for j in range(4): mfma(ACC+4*j, 16+4*st, B+4*j, None if st == 0 else ACC+4*j)
    e("s_lshl_b32 s60, s3, 11\nv_lshl_add_u32 v10, v1, 4, s60\ns_mov_b32 exec_hi, 0")
    for j in range(4): e(f"ds_write_b128 v10, v[{ACC+4*j}:{ACC+4*j+3}] offset:{L_R1+512*j}")
    e("s_mov_b32 exec_hi, -1")
    e("s_mul_i32 s32, s32, 1664525\ns_add_u32 s32, s32, 1013904223")
    e("s_mul_i32 s60, s3, s67\ns_lshl_b32 s60, s60, 1\ns_add_u32 s66, s66, s60\ns_add_u32 s67, s67, s66\nv_lshlrev_b32 v10, 3, v1\nv_mov_b32 v13, s32\nv_mov_b32 v15, s32")
    lds_sync(L_CNT+4, "L_sync1", 11, 12)
    for w in range(4): e(f"ds_read_b64 v[{16+2*w}:{17+2*w}], v5 offset:{L_R1+2048*w}")
    e("s_waitcnt lgkmcnt(0)\nv_add_f32 v16, v16, v18\nv_add_f32 v17, v17, v19\nv_add_f32 v20, v20, v22\nv_add_f32 v21, v21, v23\nv_add_f32 v12, v16, v20\nv_add_f32 v14, v17, v21")
    e("buffer_store_dwordx2 v[12:13], v10, s[44:47], s66 offen sc1\nbuffer_store_dwordx2 v[14:15], v10, s[44:47], s67 offen sc1")
    e("s_branch L_S_gather")
    e("L_S_nop1:\ns_waitcnt lgkmcnt(0)\ns_load_dword s32, s[30:31], 0")
    srd(44, 30, 0x10000000)
    e("s_barrier")
    stamp(1); stamp(2)
    e("s_waitcnt lgkmcnt(0)\ns_mul_i32 s32, s32, 1664525\ns_add_u32 s32, s32, 1013904223\ns_sleep 80")
    e("L_S_gather:")
    stamp(3)
    e("s_lshr_b32 s34, s5, 3\ns_lshl_b32 s60, s4, 2\ns_add_u32 s34, s34, s60\ns_and_b32 s35, s5, 7")
    e(f"s_lshl_b32 s20, s34, 14\ns_lshl_b32 s60, s3, 7\ns_add_u32 s20, s20, s60\ns_add_u32 s20, s20, {WS_O}\ns_add_u32 s21, s20, 8192\ns_lshl_b32 s22, s34, 8\ns_add_u32 s22, s22, {WS_LSE}")
    e(f"s_lshl_b32 s14, s35, 18\ns_lshl_b32 s60, s3, 16\ns_add_u32 s14, s14, s60\ns_lshl_b32 s60, s34, 10\ns_add_u32 s14, s14, s60\ns_add_u32 s14, s14, {WS_F}\ns_add_u32 s15, s14, 32768")
    e("v_lshlrev_b32 v0, 9, v6\nv_lshl_add_u32 v0, v7, 4, v0\nv_and_b32 v4, 4, v6\nv_lshlrev_b32 v4, 2, v4\nv_and_b32 v8, 3, v6\nv_add_u32 v4, v4, v8\nv_lshl_add_u32 v4, v7, 2, v4\nv_lshlrev_b32 v4, 3, v4")
    e(f"s_lshl_b32 s66, s4, 16\ns_lshl_b32 s60, s6, 13\ns_add_u32 s66, s66, s60\ns_lshl_b32 s60, s3, 10\ns_add_u32 s66, s66, s60\ns_add_u32 s66, s66, {WS_Q}\ns_add_u32 s67, s66, 4096\nv_lshlrev_b32 v8, 4, v1")
    e(f"v_and_b32 v10, 31, v1\nv_min_u32 v9, 27, v10\nv_lshlrev_b32 v9, 4, v9\nv_lshrrev_b32 v11, 5, v1\nv_mul_u32_u24 v12, 57344, v11\nv_add_u32 v9, v9, v12")
    e(f"s_mul_i32 s68, s3, 114688\ns_mul_i32 s60, s34, 448\ns_add_u32 s68, s68, s60\ns_add_u32 s68, s68, {WS_GU}\ns_add_u32 s69, s68, 14336\ns_add_u32 s62, s69, 14336\ns_add_u32 s63, s62, 14336")
    if dry: e("s_mov_b64 s[92:93], 0\ns_mov_b64 exec, 0\ns_branch L_S_tail\nL_S_back:\ns_mov_b64 s[92:93], -1\ns_mov_b64 exec, -1")
    e("s_waitcnt vmcnt(0)")
    if d1: e(f"s_sleep {d1}")
    def g1():
        e("buffer_load_dwordx4 v[24:27], v8, s[44:47], s66 offen sc1\nbuffer_load_dwordx4 v[28:31], v8, s[44:47], s67 offen sc1")
        for k, sr in enumerate((68, 69, 62, 63)): e(f"buffer_load_dwordx4 v[{32+4*k}:{35+4*k}], v9, s[44:47], s{sr} offen sc1")
    poll("L_g1", g1, list(range(25, 48, 2)), 12, sl1)
    stamp(4)
    e("v_add_f32 v24, v24, v28\nv_add_f32 v26, v26, v30\nv_cvt_pk_bf16_f32 v24, v24, v26\ns_mul_i32 s60, s3, 272\nv_lshl_add_u32 v12, v1, 2, s60")
    e(f"ds_write_b32 v12, v24 offset:{L_QL}")
    e("v_add_f32 v32, v32, v36\nv_add_f32 v34, v34, v38\nv_add_f32 v40, v40, v44\nv_add_f32 v42, v42, v46\nv_max_f32 v32, 0, v32\nv_max_f32 v34, 0, v34")
    e("v_cvt_pk_bf16_f32 v32, v32, v34\nv_cvt_pk_bf16_f32 v40, v40, v42\nv_and_b32 v34, 0xffff0000, v32\nv_lshlrev_b32 v32, 16, v32\nv_and_b32 v42, 0xffff0000, v40\nv_lshlrev_b32 v40, 16, v40")
    e("v_mul_f32 v32, v32, v40\nv_mul_f32 v34, v34, v42\nv_cvt_pk_bf16_f32 v32, v32, v34\nv_cmp_gt_u32 vcc, 28, v10\nv_cndmask_b32 v32, 0, v32, vcc")
    e("v_mul_u32_u24 v12, 144, v11\nv_lshl_add_u32 v12, v10, 2, v12\ns_mul_i32 s60, s3, 288\nv_add_u32 v12, s60, v12")
    e(f"ds_write_b32 v12, v32 offset:{L_HL}")
    srd(48, 16, 0x400000); srd(52, 24, 0x1c0000)
    e("v_lshlrev_b32 v10, 14, v7\nv_lshl_add_u32 v10, v6, 3, v10")
    e("s_lshl_b32 s66, s34, 17\ns_lshl_b32 s60, s3, 11\ns_add_u32 s66, s66, s60\ns_lshl_b32 s33, s35, 7\ns_add_u32 s66, s66, s33\ns_add_u32 s67, s66, 8192\ns_add_u32 s68, s66, 65536\ns_add_u32 s69, s66, 73728")
    e("v_lshlrev_b32 v9, 13, v7\nv_lshl_add_u32 v9, v6, 3, v9")
    e("s_mul_i32 s62, s34, 57344\ns_lshl_b32 s60, s3, 15\ns_add_u32 s62, s62, s60\ns_add_u32 s62, s62, s33\ns_add_u32 s63, s62, 4096")
    e("s_waitcnt lgkmcnt(0)\ns_barrier")
    stamp(5)
    e("s_barrier")
    WO = 24; WD = 40; BO = 56
    for i in range(8): e(f"buffer_load_dwordx2 v[{WO+2*i}:{WO+2*i+1}], v10, s[48:51], s{66+(i>>1)} offen offset:{1024*(i&1)}{nt_w}")
    e("s_cmp_ge_u32 s3, 2\ns_cbranch_scc1 L_S_nod")
    for i in range(8): e(f"buffer_load_dwordx2 v[{WD+2*i}:{WD+2*i+1}], v9, s[52:55], s{62+(i>>2)} offen offset:{1024*(i&3)}{nt_w}")
    e(f"v_and_b32 v10, 7, v1\nv_mul_u32_u24 v10, 144, v10\nv_lshl_add_u32 v10, v7, 4, v10\ns_lshl_b32 s60, s3, 6\nv_add_u32 v10, s60, v10\nds_read_b128 v[12:15], v10 offset:{L_HL}")
    e("L_S_nod:")
    stamp(6)
    e("s_barrier")
    e("L_S_tail:\ns_waitcnt vmcnt(0)")
    stamp(7)
    OR_ = (16, 72)
    def lse(): e("buffer_load_dwordx2 v[2:3], v4, s[44:47], s22 offen sc1")
    def opoll():
        for hf in range(2):
            for i in range(2): e(f"buffer_load_dwordx4 v[{OR_[hf]+4*i}:{OR_[hf]+4*i+3}], v0, s[44:47], s{20+hf} offen offset:{64*i} sc1")
        if not sent: lse()
    e("s_cbranch_execz L_t0"); (lse if sent else opoll)(); e("L_t0:")
    for n in range(4): transpose(BO, WO, 2, n)
    e("s_lshl_b32 s60, s3, 11\nv_lshl_add_u32 v10, v1, 4, s60")
    e("s_cmp_ge_u32 s3, 2\ns_cbranch_scc1 L_S_nod2")
    for n in range(4): transpose(24, WD, 2, n)
    e("s_waitcnt lgkmcnt(0)")
    for j in range(4): mfma(40+4*j, 12, 24+4*j, None)
    e("s_mov_b32 exec_hi, 0")
    for j in range(4): e(f"ds_write_b128 v10, v[{40+4*j}:{40+4*j+3}] offset:{L_RD+512*j}")
    e("s_mov_b64 exec, s[92:93]\nL_S_nod2:")
    otags = [r+k for r in OR_ for k in (1, 3, 5, 7)]
    def weights():
        e("v_max_f32_dpp v9, v2, v2 quad_perm:[1,0,3,2] row_mask:0xf bank_mask:0xf\nv_max_f32_dpp v9, v9, v9 quad_perm:[2,3,0,1] row_mask:0xf bank_mask:0xf")
        e("v_sub_f32 v2, v2, v9\nv_exp_f32 v2, v2\nv_add_f32_dpp v9, v2, v2 quad_perm:[1,0,3,2] row_mask:0xf bank_mask:0xf\nv_add_f32_dpp v9, v9, v9 quad_perm:[2,3,0,1] row_mask:0xf bank_mask:0xf\nv_rcp_f32 v9, v9\nv_mul_f32 v2, v2, v9")
    if sent:
        poll("L_g2", lse, [3], 9, sl2, first=False)
        e("s_cbranch_execz L_t1"); opoll(); e("L_t1:")
        weights()
        poll("L_g4", opoll, otags, 9, sl2, first=False)
    else:
        poll("L_g4", opoll, otags + [3], 9, sl2, first=False)
    stamp(8)
    for hf in range(2):
        a = OR_[hf]
        e(f"v_mov_b32 v{a+1}, v{a+2}\nv_mov_b32 v{a+2}, v{a+4}\nv_mov_b32 v{a+3}, v{a+6}")
    for hf in range(2):
        for j in range(4): mfma(24+16*hf+4*j, OR_[hf], BO+4*j, None)
    if not sent: weights()
    e(f"s_lshl_b32 s60, s3, 9\nv_lshl_add_u32 v11, v1, 2, s60\nv_add_u32 v11, {L_R3}, v11")
    for hf in range(2):
        for r in range(4):
            for j in range(4):
                a = 24+16*hf+4*j+r; y = OR_[hf]+4+j
                e(f"v_{'mul' if r == 0 else 'fmac'}_f32_dpp v{y}, v2, v{a} row_newbcast:{4*hf+r} row_mask:0xf bank_mask:0xf")
        e(f"ds_write_b128 v10, v[{OR_[hf]+4}:{OR_[hf]+7}] offset:{L_R3+1024*hf}")
    e("v_mov_b32 v33, s32\nv_mov_b32 v35, s32\nv_mov_b32 v37, s32\nv_mov_b32 v39, s32\ns_waitcnt lgkmcnt(0)")
    skip("L_t2", "s_barrier")
    for w in range(4): e(f"ds_read2st64_b32 v[{16+2*w}:{17+2*w}], v11 offset0:{8*w} offset1:{8*w+1}")
    for w in range(2): e(f"ds_read_b64 v[{26+2*w}:{27+2*w}], v5 offset:{L_RD+2048*w}")
    e("s_waitcnt lgkmcnt(0)\nv_add_f32 v16, v16, v18\nv_add_f32 v20, v20, v22\nv_add_f32 v34, v26, v28\nv_add_f32 v32, v16, v20")
    e("v_add_f32 v17, v17, v19\nv_add_f32 v21, v21, v23\nv_add_f32 v38, v27, v29\nv_add_f32 v36, v17, v21")
    if dry: e("s_cbranch_execz L_S_back")
    e("buffer_store_dwordx4 v[32:35], v8, s[44:47], s14 offen sc1\nbuffer_store_dwordx4 v[36:39], v8, s[44:47], s15 offen sc1")
    stamp(9)
    if stamps:
        e("s_cmp_lg_u32 s3, 0\ns_cbranch_scc1 L_end"); flush(0, 10)
    e("s_endpgm")
    e("L_A:\ns_sub_u32 s3, s3, 4\ns_setprio 1")
    KR = 16; VR = 48; S = 8; PG = 16; T = 32
    e("s_lshl_b32 s33, s6, 23\ns_lshl_b32 s60, s4, 20\ns_add_u32 s33, s33, s60\ns_lshl_b32 s60, s7, 16\ns_add_u32 s33, s33, s60\ns_lshl_b32 s60, s3, 13\ns_add_u32 s33, s33, s60\ns_add_u32 s33, s33, 0xc0000\ns_add_u32 s34, s33, 4096")
    e("v_lshlrev_b32 v2, 8, v6\nv_lshl_add_u32 v2, v7, 4, v2\nv_lshlrev_b32 v3, 10, v7\nv_lshl_add_u32 v3, v6, 4, v3")
    e("s_waitcnt lgkmcnt(0)")
    srd(36, 10, 0x4000000); srd(40, 12, 0x4000000)
    e("s_barrier")
    for t in range(2):
        for d in range(4): e(f"buffer_load_dwordx4 v[{KR+16*t+4*d}:{KR+16*t+4*d+3}], v2, s[36:39], s{33+t} offen offset:{64*d}{nt_kv}")
    e("s_setprio 0")
    stamp(0)
    for i in range(8): e(f"buffer_load_dwordx4 v[{VR+4*i}:{VR+4*i+3}], v3, s[40:43], s{33+(i>>2)} offen offset:{256*(i&3)}{nt_kv}")
    e("s_setprio 2\ns_load_dword s32, s[30:31], 0")
    stamp(1)
    srd(44, 30, 0x10000000); srd(48, 8, 8192); srd(56, 26, 8192)
    e(f"s_lshl_b32 s60, s4, 2\ns_add_u32 s60, s60, s3\ns_lshl_b32 s20, s60, 14\ns_lshl_b32 s21, s5, 9\ns_add_u32 s20, s20, s21\ns_add_u32 s20, s20, {WS_O}")
    e(f"s_lshl_b32 s21, s60, 8\ns_lshl_b32 s60, s5, 3\ns_add_u32 s21, s21, s60\ns_add_u32 s21, s21, {WS_LSE}")
    e("s_lshl_b32 s22, s6, 10\ns_lshl_b32 s60, s4, 7\ns_add_u32 s22, s22, s60\ns_lshl_b32 s60, s7, 5\ns_add_u32 s22, s22, s60")
    e(f"s_lshl_b32 s84, s4, 18\ns_lshl_b32 s60, s6, 15\ns_add_u32 s84, s84, s60\ns_lshl_b32 s60, s7, 8\ns_add_u32 s84, s84, s60\ns_add_u32 s84, s84, {WS_F}")
    for i in range(1, 8): e(f"s_add_u32 s{84+i}, s84, {4096*i}")
    e(f"v_and_b32 v0, 3, v1\nv_mul_u32_u24 v2, 272, v0\nv_lshl_add_u32 v2, v7, 4, v2\nv_lshlrev_b32 v0, 5, v0\ns_mov_b32 s62, {SCALE}\ns_mov_b32 s63, {LOG2E}")
    e("s_waitcnt lgkmcnt(0)\ns_mul_i32 s32, s32, 1664525\ns_add_u32 s32, s32, 1013904223")
    e("s_barrier")
    QF = (4, 16, 32, 4)
    e(f"ds_read_b128 v[4:7], v2 offset:{L_QL}\ns_waitcnt vmcnt(8) lgkmcnt(0)")
    for d in range(4):
        if d: e(f"s_waitcnt lgkmcnt({3-d})")
        for t in range(2): mfma(S+4*t, KR+16*t+4*d, QF[d], None if d == 0 else S+4*t)
        if d == 0:
            e("s_nop 4")
            for dd in range(1, 4): e(f"ds_read_b128 v[{QF[dd]}:{QF[dd]+3}], v2 offset:{L_QL+64*dd}")
    e("s_lshl_b32 s60, s3, 2\nv_add_u32 v2, s60, v0")
    for k in range(4):
        a, b = S+2*k, S+2*k+1
        e(f"v_cvt_pk_bf16_f32 v{b}, v{a}, v{b}\nv_lshlrev_b32 v{a}, 16, v{b}\nv_and_b32 v{b}, 0xffff0000, v{b}\nv_mul_f32 v{a}, s62, v{a}\nv_mul_f32 v{b}, s62, v{b}")
        e(f"v_cvt_pk_bf16_f32 v{b}, v{a}, v{b}\nv_lshlrev_b32 v{a}, 16, v{b}\nv_and_b32 v{b}, 0xffff0000, v{b}")
    e(f"v_max3_f32 v4, v{S}, v{S+1}, v{S+2}\nv_max3_f32 v4, v4, v{S+3}, v{S+4}\nv_max3_f32 v4, v4, v{S+5}, v{S+6}\nv_max_f32 v4, v4, v{S+7}")
    red_swap("v_max_f32", 4, 5, [16, 32])
    e(f"s_mov_b64 exec, 15\nds_write_b32 v2, v4 offset:{L_MX}\ns_mov_b64 exec, -1\ns_waitcnt lgkmcnt(0)\ns_barrier")
    e(f"ds_read_b128 v[{T}:{T+3}], v0 offset:{L_MX}\nds_read_b128 v[{T+4}:{T+7}], v0 offset:{L_MX+16}\ns_waitcnt lgkmcnt(0)")
    e(f"v_max3_f32 v4, v{T}, v{T+1}, v{T+2}\nv_max3_f32 v4, v4, v{T+3}, v{T+4}\nv_max3_f32 v4, v4, v{T+5}, v{T+6}\nv_max_f32 v4, v4, v{T+7}")
    for k in range(8): e(f"v_sub_f32 v{S+k}, v{S+k}, v4\nv_mul_f32 v{S+k}, s63, v{S+k}")
    for k in range(8): e(f"v_exp_f32 v{S+k}, v{S+k}")
    e("v_mul_f32 v4, s63, v4\nv_readlane_b32 s35, v4, s3")
    e(f"v_add_f32 v4, v{S}, v{S+1}\nv_add_f32 v5, v{S+2}, v{S+3}\nv_add_f32 v6, v{S+4}, v{S+5}\nv_add_f32 v7, v{S+6}, v{S+7}\nv_add_f32 v4, v4, v5\nv_add_f32 v6, v6, v7\nv_add_f32 v4, v4, v6")
    for k in range(4): e(f"v_cvt_pk_bf16_f32 v{T+k}, v{S+2*k}, v{S+2*k+1}")
    red_swap("v_add_f32", 4, 5, [16, 32])
    e(f"s_mov_b64 exec, 15\nds_write_b32 v2, v4 offset:{L_LS}\ns_mov_b64 exec, -1")
    for g in range(4):
        m = 0x000F000F << (4*g)
        e(f"s_mov_b32 s66, {m}\ns_mov_b32 s67, {m}")
        for k in range(4): e(f"v_cndmask_b32 v{PG+4*g+k}, 0, v{T+k}, s[66:67]")
    e(f"s_lshl_b32 s60, s3, 11\nv_lshl_add_u32 v4, v1, 3, s60\nv_add_u32 v4, {L_RO}, v4\nv_add_u32 v5, 1024, v4")
    e("s_lshl_b32 s60, s3, 9\nv_lshl_add_u32 v6, v1, 3, s60\ns_lshl_b32 s60, s3, 5\nv_mov_b32 v7, s60\nv_lshlrev_b32 v2, 3, v1\nv_and_b32 v0, 15, v1\nv_lshlrev_b32 v0, 1, v0")
    if dry: e("s_mov_b64 s[92:93], 0\ns_mov_b64 exec, 0\ns_branch L_A_tail\nL_A_back:\ns_mov_b64 s[92:93], -1\ns_mov_b64 exec, -1")
    stamp(2)
    for t in range(2):
        for n in (2*t, 2*t+1):
            e(f"s_waitcnt vmcnt({6-2*n})")
            if n == 3: stamp(3)
            transpose(T, VR, 4, n, fs=2, n0=2*t)
        for j in range(8): mfma16(S+4*(j&1), PG+4*(j>>1)+2*t, T+2*j, None if (j < 2 and t == 0) else S+4*(j&1))
    for h in range(4): e(f"ds_write2_b32 v{4+(h>>1)}, v{S+h}, v{S+4+h} offset0:{128*(h&1)} offset1:{128*(h&1)+1}")
    e("s_waitcnt lgkmcnt(0)\ns_barrier")
    e("L_A_tail:\ns_cmp_ge_u32 s3, 4\ns_cbranch_scc1 L_A_hi")
    e(f"ds_read_b128 v[32:35], v7 offset:{L_LS}\nds_read_b128 v[36:39], v7 offset:{L_LS+16}")
    for w in range(8): e(f"ds_read_b64 v[{16+2*w}:{17+2*w}], v6 offset:{L_RO+2048*w}")
    e("v_mov_b32 v41, s32\nv_mov_b32 v43, s32")
    e("s_waitcnt lgkmcnt(8)\nv_add_f32 v32, v32, v33\nv_add_f32 v34, v34, v35\nv_add_f32 v36, v36, v37\nv_add_f32 v38, v38, v39\nv_add_f32 v32, v32, v34\nv_add_f32 v36, v36, v38\nv_add_f32 v32, v32, v36\nv_rcp_f32 v33, v32\nv_log_f32 v42, v32")
    e("s_waitcnt lgkmcnt(0)")
    for st in (2, 4, 8):
        for w in range(0, 16, 2*st): e(f"v_add_f32 v{16+w}, v{16+w}, v{16+w+st}\nv_add_f32 v{17+w}, v{17+w}, v{17+w+st}")
    e("v_mul_f32 v16, v16, v33\nv_mul_f32 v17, v17, v33\nv_cvt_pk_bf16_f32 v40, v16, v17\nv_add_f32 v42, s35, v42")
    if dry: e("s_cbranch_execz L_A_back")
    e(f"buffer_store_dwordx2 v[40:41], v2, s[44:47], s20 offen{st_o}\ns_mov_b64 exec, 1\nbuffer_store_dwordx2 v[42:43], v2, s[44:47], s21 offen{st_o}")
    e("s_endpgm")
    e("L_A_hi:\ns_cmp_eq_u32 s3, 4\ns_cbranch_scc1 L_A_fin")
    if dry: e("s_cbranch_execz L_A_back")
    if stamps:
        e("s_cmp_lg_u32 s3, 7\ns_cbranch_scc1 L_end"); flush(10, 14)
    e("s_endpgm\nL_A_fin:")
    skip("L_f0", "buffer_load_ushort v14, v0, s[48:51], s22 offen\ns_setprio 3\ns_barrier")
    def g3():
        for i in range(8): e(f"buffer_load_dwordx4 v[{16+4*i}:{19+4*i}], v3, s[44:47], s{84+i} offen sc1")
    if dry: e("s_cbranch_execz L_f1")
    poll("L_g3", g3, list(range(17, 48, 2)), 12, sl3)
    e("L_f1:")
    stamp(0)
    for st in (4, 8, 16):
        for w in range(0, 32, 2*st): e(f"v_add_f32 v{16+w}, v{16+w}, v{16+w+st}\nv_add_f32 v{18+w}, v{18+w}, v{18+w+st}")
    for w in (16, 32): e(f"v_mov_b32 v17, v16\nv_mov_b32 v19, v18\nv_permlane{w}_swap_b32 v16, v17\nv_permlane{w}_swap_b32 v18, v19\nv_add_f32 v16, v16, v17\nv_add_f32 v18, v18, v19")
    e("v_cvt_pk_bf16_f32 v18, v16, v18\nv_lshlrev_b32 v16, 16, v18\nv_and_b32 v18, 0xffff0000, v18")
    e(f"v_mul_f32 v19, 0xbfb8aa3b, v18\nv_exp_f32 v19, v19\nv_lshlrev_b32 v14, 16, v14\nv_add_f32 v19, 1.0, v19\nv_rcp_f32 v19, v19\nv_mul_f32 v18, v18, v19"); rb(18)
    e("v_mul_f32 v16, v16, v18"); rb(16)
    e("v_add_f32 v16, v16, v14\nv_cvt_pk_bf16_f32 v16, v16, v16")
    if dry: e("s_cbranch_execz L_A_back")
    e("s_mov_b64 exec, 0xffff\nbuffer_store_short v16, v0, s[56:59], s22 offen")
    e("s_cmp_lg_u32 s2, 0\ns_cbranch_scc1 L_fin\ns_mov_b64 exec, 1\nv_mov_b32 v16, s32\nv_mov_b32 v17, 0\nbuffer_store_dword v16, v17, s[44:47], 0 offen sc1\nL_fin:")
    if stamps:
        e("s_waitcnt vmcnt(0)"); stamp(1); flush(14, 16)
    e("L_end:\ns_endpgm\nL_codeend:")
    body = pad_hazards(L)
    tail = f""".section .rodata,"a"
.p2align 6
.amdhsa_kernel {NAME}_kernel
  .amdhsa_next_free_vgpr {nv}
  .amdhsa_next_free_sgpr 96
  .amdhsa_accum_offset {nv}
  .amdhsa_group_segment_fixed_size 0
  .amdhsa_kernarg_size 96
  .amdhsa_user_sgpr_count 2
  .amdhsa_user_sgpr_kernarg_segment_ptr 1
  .amdhsa_system_sgpr_workgroup_id_x 1
.end_amdhsa_kernel
"""
    return HDR + "\n".join(body) + "\n" + tail
if __name__ == "__main__":
    open(f"cdna_kernels/{NAME}.s", "w").write(gen())
    V = dict(a=dict(), b=dict(pf=False, dry=False), c=dict(dry=False), d=dict(sent=False), e=dict(nv=128), f=dict(st_o=""))
    for k, kw in V.items(): open(f"k_{k}.s", "w").write(gen(stamps=True, **kw))
```

```python
import sys
sys.path.insert(0, "work")
from asmlib import pad_hazards
NAME = "recurrent_scan__sliding_block_cached__glu_gated_reglu__decode"
HDR = open(f"cdna_kernels/{NAME}.s.ref").read().split("; Override launch")[0]
WS_Q, WS_GU, WS_O, WS_LSE, WS_F = 0x10000, 0x100000, 0x200000, 0x300000, 0x400000
L_CNT, L_MX, L_LS, L_QL, L_HL, L_XN, L_R1, L_RO, L_R3, L_RD = 0, 128, 256, 512, 1664, 2944, 11264, 19456, 35840, 11264
LDS_SIZE = 44032
DELTA = 0x800000
WS_P = 0x8000
LOG2E = 0x3fb8aa3b; SCALE = 0x3db504f3
def gen(stamps=False, nt_w=" nt", nt_kv=" nt", nt_v=None, nt_o=None, nv=112, pf=False, dry=False, sl1=8, sl2=2, sl3=1, d1=16, sent=False, dual=True, dualq=True, k0=0, ack=True, msk=15, late=False, force=False, dryA=0, fa=' nt', fg='', fp='', b0e=True, wov=True, slq=0, tlb=0, exp=0, nt_x='', d3=16, probe=0, early=False, pvw=True, st_out='', mq=7):
    L = []
    if nt_v is None: nt_v = nt_kv
    if nt_o is None: nt_o = nt_w
    def e(s):
        for x in s.split("\n"): L.append(x)
    def stamp(i):
        if stamps: e(f"s_memrealtime s[{70+2*i}:{71+2*i}]")
    def flush(lo, hi):
        if not stamps: return
        e("s_waitcnt lgkmcnt(0)\ns_mov_b64 exec, 1\ns_lshl_b32 s60, s2, 7\ns_add_u32 s60, s60, 0x8000000\nv_mov_b32 v2, 0")
        for i in range(lo, hi):
            e(f"v_mov_b32 v4, s{70+2*(i-lo)}\nv_mov_b32 v5, s{71+2*(i-lo)}\nbuffer_store_dwordx2 v[4:5], v2, s[44:47], s60 offen offset:{8*i}")
    def srd(d, p, n): e(f"s_mov_b32 s{d}, s{p}\ns_mov_b32 s{d+1}, s{p+1}\ns_mov_b32 s{d+2}, {n}\ns_mov_b32 s{d+3}, 0x20000")
    def red_swap(op, v, t, which):
        for w in which: e(f"v_mov_b32 v{t}, v{v}\nv_permlane{w}_swap_b32 v{v}, v{t}\n{op} v{v}, v{v}, v{t}")
    def rb(v): e(f"v_cvt_pk_bf16_f32 v{v}, v{v}, v{v}\nv_and_b32 v{v}, 0xffff0000, v{v}")
    def lds_sync(cnt, lab, va, vt):
        e(f"s_waitcnt lgkmcnt(0)\nv_mov_b32 v{va}, 0\nv_mov_b32 v{vt}, 1\ns_mov_b64 exec, 1\nds_add_u32 v{va}, v{vt} offset:{cnt}\ns_mov_b64 exec, -1")
        e(f"{lab}:\nds_read_b32 v{vt}, v{va} offset:{cnt}\ns_waitcnt lgkmcnt(0)\nv_readfirstlane_b32 s60, v{vt}\ns_cmp_lt_u32 s60, 4\ns_cbranch_scc1 {lab}")
    def alt(on):
        if on: e(f"s_add_u32 s96, s30, {DELTA}\ns_addc_u32 s97, s31, 0")
    FB = ("s[44:47]", " sc1")
    FA = ("s[96:99]", fa)
    def poll(lab, loads, tags, acc, sl, first=True, du=False, emb=False, w0=0, nowait=False, m=None):
        if first:
            e(f"s_cbranch_execz {lab}d"); loads(*(FA if du else FB))
        if nowait: e(f"s_branch {lab}d")
        if w0: e(f"s_cbranch_execz {lab}d\ns_waitcnt vmcnt({w0})\ns_branch {lab}d")
        e(f"s_cbranch_execz {lab}d\ns_branch {lab}c\n{lab}r:\ns_mov_b64 exec, vcc\ns_sub_u32 s61, s61, 1\ns_cmp_lt_i32 s61, 0\ns_cbranch_scc1 {lab}k")
        if sl: e(f"s_sleep {sl}")
        if du:
            e(f"s_and_b32 s60, s61, {m or msk}\ns_cbranch_scc1 {lab}a"); loads(*FB); e(f"s_branch {lab}c\n{lab}a:"); loads(*FA)
        else: loads(*FB)
        e(f"{lab}c:\ns_waitcnt vmcnt(0)\n{lab}d:\nv_xor_b32 v{acc}, s32, v{tags[0]}")
        for k, t in enumerate(tags[1:]): e(f"v_bitop3_b32 v{acc}, v{acc}, v{t}, s{(32, 9, 10, 11)[(k+1) & 3] if emb else 32} bitop3:0xf6")
        if emb: e(f"v_and_b32 v{acc}, 0xff, v{acc}")
        e(f"v_cmp_ne_u32 vcc, 0, v{acc}\ns_cbranch_vccnz {lab}r\n{lab}k:\ns_mov_b64 exec, s[92:93]")
    def mktag(sel):
        e("s_mul_i32 s32, s32, 1664525\ns_add_u32 s32, s32, 1013904223\ns_lshr_b32 s9, s32, 8\ns_lshr_b32 s10, s32, 16\ns_lshr_b32 s11, s32, 24")
        if sel:
            for k in range(4): e(f"s_mov_b32 s{26+k}, {0x07060500+k}")
    def embed(d, vt):
        for k in range(4): e(f"v_perm_b32 v{d+k}, v{d+k}, v{vt}, s{26+k}")
    def strip(rs):
        for r in rs: e(f"v_and_b32 v{r}, 0xffffff00, v{r}")
    def transpose(dst, src, rw, n, fs=4, n0=0):
        for j in range(2*rw):
            e(f"v_perm_b32 v{dst+fs*j+n-n0}, v{src+rw*(2*n+1)+(j>>1)}, v{src+rw*(2*n)+(j>>1)}, s{64+(j&1)}")
    def mfma(d, a, b, c): e(f"v_mfma_f32_16x16x32_bf16 v[{d}:{d+3}], v[{a}:{a+3}], v[{b}:{b+3}], " + ("0" if c is None else f"v[{c}:{c+3}]"))
    def mfma16(d, a, b, c): e(f"v_mfma_f32_16x16x16_bf16 v[{d}:{d+3}], v[{a}:{a+1}], v[{b}:{b+1}], " + ("0" if c is None else f"v[{c}:{c+3}]"))
    def ptab(lab):
        e(f"s_getreg_b32 s19, hwreg(HW_REG_XCC_ID, 0, 4)\ns_lshl_b32 s18, s4, 8\ns_add_u32 s18, s18, {WS_P}")
        e(f"s_cmp_lg_u32 s3, 0\ns_cbranch_scc1 {lab}\ns_lshl_b32 s60, s5, 3\nv_mov_b32 v84, s60\nv_mov_b32 v86, s19\nv_mov_b32 v87, s32\ns_mov_b64 exec, 1\nbuffer_store_dwordx2 v[86:87], v84, s[44:47], s18 offen\ns_mov_b64 exec, -1\n{lab}:")
    def skip(lab, code):
        e(f"s_cbranch_execz {lab}"); e(code); e(f"{lab}:")

    e(f"; @launch grid=(256,1,1) block=(768,1,1) lds={LDS_SIZE}")
    e('.amdgcn_target "amdgcn-amd-amdhsa--gfx950"\n.text')
    e(f".globl {NAME}_kernel\n.p2align 8\n.type {NAME}_kernel,@function\n{NAME}_kernel:")
    stamp(0)
    if probe: e("s_memrealtime s[70:71]")
    def pr(n):
        if probe == n: e("s_memrealtime s[72:73]")
    e("s_cmp_ge_u32 s2, 256\ns_cbranch_scc1 L_end")
    e("s_load_dwordx16 s[8:23], s[0:1], 0\ns_load_dwordx8 s[24:31], s[0:1], 64")
    if pf:
        e(f"s_and_b32 s3, s2, {pf}\ns_cbranch_scc1 L_nopf\nv_cmp_gt_u32 vcc, (L_codeend-L_pc)/128, v0\ns_cbranch_vccz L_nopf\ns_getpc_b64 s[56:57]\nL_pc:")
        e("s_mov_b64 exec, vcc\nv_lshlrev_b32 v2, 7, v0\nv_mov_b32 v3, s57\nv_add_co_u32 v2, vcc, s56, v2\nv_addc_co_u32 v3, vcc, 0, v3, vcc\nglobal_load_dword v95, v[2:3], off\ns_mov_b64 exec, -1\nL_nopf:")
    e("v_lshrrev_b32 v2, 6, v0\nv_and_b32 v1, 63, v0\nv_readfirstlane_b32 s3, v2")
    e("s_and_b32 s4, s2, 7\ns_lshr_b32 s5, s2, 3\ns_lshr_b32 s6, s5, 2\ns_and_b32 s7, s5, 3")
    e("s_mov_b32 s64, 0x05040100\ns_mov_b32 s65, 0x07060302\ns_mov_b32 s61, 20000\ns_mov_b64 s[92:93], -1")
    e("v_and_b32 v6, 15, v1\nv_lshrrev_b32 v7, 4, v1")
    e("s_cmp_ge_u32 s3, 4\ns_cbranch_scc1 L_A")
    e("s_setprio 3")
    W = 24
    e("v_mov_b32 v2, 0\nv_mov_b32 v3, 0\nds_write2_b64 v2, v[2:3], v[2:3] offset0:0 offset1:1\nds_write_b64 v2, v[2:3] offset:16")
    e("v_lshlrev_b32 v8, 5, v1\ns_lshl_b32 s33, s3, 11")
    e("v_lshrrev_b32 v5, 5, v1\nv_lshlrev_b32 v5, 2, v5\nv_bfe_u32 v11, v1, 1, 4\nv_lshl_add_u32 v5, v11, 4, v5\nv_and_b32 v11, 1, v1\nv_lshl_add_u32 v5, v11, 10, v5")
    e("s_lshr_b32 s60, s3, 1\ns_lshl_b32 s60, s60, 8\ns_and_b32 s62, s3, 1\ns_lshl_b32 s62, s62, 3\ns_add_u32 s60, s60, s62\nv_add_u32 v5, s60, v5\nv_and_b32 v3, 1, v7\nv_lshlrev_b32 v3, 2, v3\nv_lshl_add_u32 v3, v6, 4, v3\nv_lshrrev_b32 v11, 5, v1\nv_lshl_add_u32 v3, v11, 12, v3\nv_add_u32 v3, s60, v3")
    e(f"s_lshl_b32 s90, s4, 15\ns_lshl_b32 s60, s6, 12\ns_add_u32 s90, s90, s60\ns_lshl_b32 s60, s3, 9\ns_add_u32 s90, s90, s60\ns_add_u32 s90, s90, {WS_Q}")
    e("v_and_b32 v13, 31, v1\nv_lshlrev_b32 v13, 4, v13\nv_lshl_add_u32 v0, v11, 11, v13")
    e("s_cmp_ge_u32 s5, 30\ns_cbranch_scc1 L_S_nop1")
    e("s_cmp_ge_u32 s5, 16\ns_cbranch_scc1 L_S_ffn")
    e("s_mov_b32 s34, 8192\ns_lshr_b32 s60, s5, 1\ns_lshl_b32 s35, s4, 3\ns_add_u32 s35, s35, s60\ns_and_b32 s62, s5, 1")
    e(f"s_lshl_b32 s66, s4, 15\ns_lshl_b32 s67, s62, 11\ns_add_u32 s66, s66, s67\ns_lshl_b32 s67, s60, 8\ns_add_u32 s66, s66, s67\ns_add_u32 s66, s66, {WS_Q}\ns_mov_b32 s67, 4096")
    e("s_waitcnt lgkmcnt(0)")
    srd(36, 14, 0x400000)
    e("s_branch L_S_p1")
    e("L_S_ffn:")
    e("s_mov_b32 s34, 3584\ns_mul_i32 s60, s4, 14\ns_add_u32 s60, s60, s5\ns_sub_u32 s60, s60, 16")
    e("s_lshr_b32 s35, s60, 2\ns_lshr_b32 s62, s60, 1\ns_and_b32 s62, s62, 1\ns_and_b32 s63, s60, 1")
    e(f"s_lshl_b32 s66, s63, 1\ns_add_u32 s66, s66, s62\ns_mul_i32 s66, s66, 7168\ns_lshl_b32 s67, s35, 8\ns_add_u32 s66, s66, s67\ns_add_u32 s66, s66, {WS_GU}\ns_mov_b32 s67, 28672")
    e("s_waitcnt lgkmcnt(0)")
    e("s_cmp_eq_u32 s63, 0\ns_cselect_b32 s36, s20, s22\ns_cselect_b32 s37, s21, s23\ns_mov_b32 s38, 0x1c0000\ns_mov_b32 s39, 0x20000")
    e("L_S_p1:")
    srd(40, 8, 8192)
    e(f"buffer_load_dwordx4 v[16:19], v8, s[40:43], s33 offen{nt_x}\nbuffer_load_dwordx4 v[20:23], v8, s[40:43], s33 offen offset:16{nt_x}")
    e("s_lshl_b32 s60, s34, 3\nv_mul_lo_u32 v9, v7, s60\nv_lshl_add_u32 v9, v6, 3, v9")
    e("s_lshl_b32 s63, s62, 2\ns_add_u32 s63, s63, s3\ns_lshl_b32 s68, s63, 6\ns_mul_i32 s68, s68, s34\ns_lshl_b32 s35, s35, 7\ns_add_u32 s68, s68, s35\ns_mul_i32 s69, s34, 25")
    if b0e: e("s_barrier")
    for st in range(2):
        for i in range(8):
            r = W + 16*st + 2*i
            if not exp & 4: e(f"buffer_load_dwordx2 v[{r}:{r+1}], v9, s[36:39], s68 offen{nt_w}")
            if i < 7: e("s_add_u32 s68, s68, s34")
        if st == 0: e("s_add_u32 s68, s68, s69")
    e("s_load_dword s32, s[30:31], 0")
    srd(44, 30, 0x10000000); srd(96, 30, 0x8000000); alt(True)
    if not b0e: e("s_barrier")
    stamp(1)
    e("s_waitcnt vmcnt(16)")
    X = 56
    for k in range(8): e(f"v_lshlrev_b32 v{X+2*k}, 16, v{16+k}\nv_and_b32 v{X+2*k+1}, 0xffff0000, v{16+k}")
    def red32(v, t):
        for r in (8, 4, 2, 1): e(f"v_add_f32_dpp v{v}, v{v}, v{v} row_ror:{r} row_mask:0xf bank_mask:0xf")
        red_swap("v_add_f32", v, t, [16])
    e(f"v_add_f32 v10, v{X}, v{X+1}\nv_add_f32 v11, v{X+2}, v{X+3}")
    for k in range(4, 16, 2): e(f"v_add_f32 v10, v10, v{X+k}\nv_add_f32 v11, v11, v{X+k+1}")
    e("v_add_f32 v10, v10, v11"); red32(10, 11)
    e("v_mul_f32 v10, 0x3b000000, v10\nv_mov_b32 v12, 0\nv_mov_b32 v13, 0")
    for k in range(0, 16, 2): e(f"v_sub_f32 v14, v{X+k}, v10\nv_sub_f32 v15, v{X+k+1}, v10\nv_fmac_f32 v12, v14, v14\nv_fmac_f32 v13, v15, v15")
    e("v_add_f32 v12, v12, v13"); red32(12, 13)
    e("v_mul_f32 v12, 0x3b000000, v12"); rb(12); rb(10)
    e("v_add_f32 v12, 0x3727c5ac, v12"); rb(12)
    e("v_sqrt_f32 v12, v12"); rb(12)
    e("v_rcp_f32 v12, v12")
    for k in range(8):
        a, b = X+2*k, X+2*k+1
        e(f"v_sub_f32 v{a}, v{a}, v10\nv_sub_f32 v{b}, v{b}, v10\nv_cvt_pk_bf16_f32 v{b}, v{a}, v{b}\nv_lshlrev_b32 v{a}, 16, v{b}\nv_and_b32 v{b}, 0xffff0000, v{b}")
        e(f"v_mul_f32 v{a}, v{a}, v12\nv_mul_f32 v{b}, v{b}, v12\nv_cvt_pk_bf16_f32 v{16+k}, v{a}, v{b}")
    e("v_lshrrev_b32 v10, 5, v1\nv_lshl_add_u32 v10, v10, 4, v8\ns_mul_i32 s60, s3, 2080\nv_add_u32 v10, s60, v10")
    e(f"ds_write_b128 v10, v[16:19] offset:{L_XN}\nds_write_b128 v10, v[20:23] offset:{L_XN+16}")
    e("v_and_b32 v10, 7, v1\nv_mul_u32_u24 v10, 1040, v10\nv_lshl_add_u32 v10, v7, 4, v10\ns_lshl_b32 s60, s63, 7\nv_add_u32 v10, s60, v10")
    lds_sync(L_CNT, "L_sync0", 11, 12)
    e(f"ds_read_b128 v[16:19], v10 offset:{L_XN}\nds_read_b128 v[20:23], v10 offset:{L_XN+64}")
    stamp(2)
    B = 56; ACC = 24
    for st in range(2):
        e(f"s_waitcnt vmcnt({8-8*st})")
        for n in range(4): transpose(B, W+16*st, 2, n)
        if st == 0: e("s_waitcnt lgkmcnt(0)")
        for j in range(4): mfma(ACC+4*j, 16+4*st, B+4*j, None if st == 0 else ACC+4*j)
    e("s_lshl_b32 s60, s3, 11\nv_lshl_add_u32 v10, v1, 4, s60\ns_mov_b32 exec_hi, 0")
    for j in range(4): e(f"ds_write_b128 v10, v[{ACC+4*j}:{ACC+4*j+3}] offset:{L_R1+512*j}")
    e("s_mov_b32 exec_hi, -1"); mktag(True)
    e("s_mul_i32 s60, s3, s67\ns_lshl_b32 s60, s60, 1\ns_add_u32 s66, s66, s60\nv_and_b32 v10, 1, v7\nv_mul_lo_u32 v10, v10, s67\nv_lshl_add_u32 v10, v6, 4, v10\nv_mov_b32 v9, s32")
    lds_sync(L_CNT+4, "L_sync1", 11, 12)
    for w in range(2):
        for p in range(2): e(f"ds_read2st64_b32 v[{16+4*w+2*p}:{17+4*w+2*p}], v3 offset0:{L_R1//256+8*w+4*p} offset1:{L_R1//256+8*w+4*p+2}")
    e("s_waitcnt lgkmcnt(0)\nv_pk_add_f32 v[16:17], v[16:17], v[20:21]\nv_pk_add_f32 v[18:19], v[18:19], v[22:23]")
    for k in range(4): e(f"v_mov_b32 v{20+k}, v{16+k}")
    for k in range(4): e(f"v_permlane32_swap_b32 v{16+k}, v{20+k}")
    e("v_pk_add_f32 v[16:17], v[16:17], v[20:21]\nv_pk_add_f32 v[18:19], v[18:19], v[22:23]"); embed(16, 9)
    e("s_mov_b32 exec_hi, 0")
    if dualq: e("s_cmp_ge_u32 s5, 16\ns_cbranch_scc1 L_S_nq\nbuffer_store_dwordx4 v[16:19], v10, s[96:99], s66 offen\nL_S_nq:")
    else: e("buffer_store_dwordx4 v[16:19], v10, s[44:47], s66 offen sc1")
    e("s_mov_b32 exec_hi, -1")
    e("s_branch L_S_gather")
    e("L_S_nop1:\ns_waitcnt lgkmcnt(0)\ns_load_dword s32, s[30:31], 0")
    srd(44, 30, 0x10000000); srd(96, 30, 0x8000000); alt(True)
    e("s_barrier")
    stamp(1); stamp(2)
    e("s_waitcnt lgkmcnt(0)"); mktag(True)
    e("v_mov_b32 v10, 0\ns_mov_b32 s66, 0")
    for k in range(16, 20): e(f"v_mov_b32 v{k}, 0")
    e("s_sleep 64\nL_S_gather:")
    stamp(3)
    def g1(r, f, v=14): e(f"buffer_load_dwordx4 v[20:23], v{v}, {r}, s90 offen{f}")
    if d1: e(f"s_sleep {d1}")
    if exp & 8: stamp(1)
    g1(*(FA if dualq else FB), v=0)
    if dualq: e("s_cmp_ge_u32 s5, 30\ns_cbranch_scc1 L_S_ns\ns_mov_b32 exec_hi, 0\nbuffer_store_dwordx4 v[16:19], v10, s[44:47], s66 offen sc1\ns_mov_b32 exec_hi, -1\nL_S_ns:")
    e("v_mov_b32 v14, v0")
    e("s_lshr_b32 s34, s5, 3\ns_lshl_b32 s60, s4, 2\ns_add_u32 s34, s34, s60\ns_and_b32 s35, s5, 7")
    e(f"s_lshl_b32 s20, s34, 14\ns_lshl_b32 s60, s3, 7\ns_add_u32 s20, s20, s60\ns_add_u32 s20, s20, {WS_O}\ns_add_u32 s21, s20, 8192\ns_lshl_b32 s22, s34, 8\ns_add_u32 s22, s22, {WS_LSE}")
    e(f"s_lshl_b32 s14, s35, 17\ns_lshl_b32 s60, s3, 15\ns_add_u32 s14, s14, s60\ns_lshl_b32 s60, s34, 9\ns_add_u32 s14, s14, s60\ns_add_u32 s14, s14, {WS_F}")
    e("v_lshlrev_b32 v0, 9, v6\nv_lshl_add_u32 v0, v7, 4, v0\nv_and_b32 v4, 4, v6\nv_lshlrev_b32 v4, 2, v4\nv_and_b32 v8, 3, v6\nv_add_u32 v4, v4, v8\nv_lshl_add_u32 v4, v7, 2, v4\nv_lshlrev_b32 v4, 3, v4")
    e("v_lshrrev_b32 v11, 5, v1\nv_and_b32 v13, 31, v1\nv_lshlrev_b32 v13, 4, v13\nv_lshl_add_u32 v8, v11, 14, v13")
    e("s_lshl_b32 s60, s3, 4\nv_lshl_add_u32 v15, v7, 2, s60\nv_cmp_gt_u32 s[94:95], 56, v15\nv_min_u32 v15, 52, v15")
    e("v_and_b32 v9, 7, v6\nv_mul_u32_u24 v9, 28672, v9\nv_lshrrev_b32 v10, 3, v6\nv_mul_u32_u24 v10, 7168, v10\nv_add_u32 v9, v9, v10\nv_lshl_add_u32 v9, v15, 2, v9")
    e("v_lshlrev_b32 v15, 10, v15\nv_lshl_add_u32 v15, v6, 3, v15")
    e(f"s_mul_i32 s12, s34, 224\ns_add_u32 s12, s12, {WS_GU}\ns_add_u32 s13, s12, 14336\ns_lshl_b32 s33, s35, 7\ns_mul_i32 s23, s34, 57344\ns_add_u32 s23, s23, s33")
    e("s_mul_i32 s60, s3, 272\nv_lshl_add_u32 v13, v1, 3, s60")
    srd(48, 16, 0x400000); srd(52, 24, 0x1c0000)
    if dualq: e("s_waitcnt vmcnt(1)\ns_cmp_lt_u32 s5, 30\ns_cbranch_scc1 L_g1d")
    poll("L_g1", g1, [20, 21, 22, 23], 12, sl1, emb=True, first=False, du=dualq, m=mq)
    stamp(4)
    strip(range(20, 24))
    for k in range(4): e(f"v_mov_b32 v{80+k}, v{20+k}")
    for k in range(4): e(f"v_permlane32_swap_b32 v{80+k}, v{20+k}")
    e("v_pk_add_f32 v[80:81], v[80:81], v[20:21]\nv_pk_add_f32 v[82:83], v[82:83], v[22:23]\nv_cvt_pk_bf16_f32 v20, v80, v81\nv_cvt_pk_bf16_f32 v21, v82, v83")
    e(f"s_mov_b32 exec_hi, 0\nds_write_b64 v13, v[20:21] offset:{L_QL}\ns_mov_b32 exec_hi, -1")
    e("v_mov_b32 v2, 0\nv_mov_b32 v12, 1\ns_mov_b64 exec, 1\ns_waitcnt lgkmcnt(0)\nds_add_u32 v2, v12 offset:8\ns_mov_b64 exec, -1")
    e("v_lshlrev_b32 v11, 14, v7\nv_lshl_add_u32 v11, v6, 3, v11")
    e("s_lshl_b32 s66, s34, 17\ns_lshl_b32 s60, s3, 11\ns_add_u32 s66, s66, s60\ns_add_u32 s66, s66, s33\ns_add_u32 s67, s66, 8192\ns_add_u32 s68, s66, 65536\ns_add_u32 s69, s66, 73728")
    WO = 24; WD = 40; BO = 56
    OR_ = (16, 72)
    ptab("L_p1")
    def wld():
        for i in range(4): e(f"buffer_load_dwordx2 v[{WD+2*i}:{WD+2*i+1}], v15, s[52:55], s23 offen offset:{1024*i}{nt_o}")
        for i in range(8): e(f"buffer_load_dwordx2 v[{WO+2*i}:{WO+2*i+1}], v11, s[48:51], s{66+(i>>1)} offen offset:{1024*(i&1)}{nt_o}")
    def spin(lab, off): e(f"{lab}w:\nds_read_b32 v12, v2 offset:{off}\ns_waitcnt lgkmcnt(0)\nv_readfirstlane_b32 s60, v12\ns_cmp_ge_u32 s60, 8\ns_cbranch_scc1 {lab}k\ns_sleep 1\ns_branch {lab}w\n{lab}k:")
    if early: wld()
    if wov: spin("L_v", 12)
    stamp(5)
    def gu(r, f): e(f"buffer_load_dwordx4 v[80:83], v9, {r}, s12 offen{f}\nbuffer_load_dwordx4 v[84:87], v9, {r}, s13 offen{f}")
    gu("s[44:47]", fg)
    if not early: wld()
    stamp(6)
    otags = [r+k for r in OR_ for k in (1, 3, 5, 7)]
    if early:
        e("s_waitcnt vmcnt(2)")
        for n in range(4): transpose(BO, WO, 2, n)
    poll("L_g5", gu, list(range(80, 88)), 12, sl1, first=False, emb=True, w0=0 if early else 8)
    strip(range(80, 88))
    for r in range(80, 88): e(f"v_add_f32_dpp v{r}, v{r}, v{r} row_ror:8 row_mask:0xf bank_mask:0xf")
    for p in range(2):
        g, u = 80+2*p, 84+2*p
        e(f"v_max_f32 v{g}, 0, v{g}\nv_max_f32 v{g+1}, 0, v{g+1}\nv_cvt_pk_bf16_f32 v{g}, v{g}, v{g+1}\nv_cvt_pk_bf16_f32 v{u}, v{u}, v{u+1}")
        e(f"v_and_b32 v{g+1}, 0xffff0000, v{g}\nv_lshlrev_b32 v{g}, 16, v{g}\nv_and_b32 v{u+1}, 0xffff0000, v{u}\nv_lshlrev_b32 v{u}, 16, v{u}")
        e(f"v_mul_f32 v{g}, v{g}, v{u}\nv_mul_f32 v{g+1}, v{g+1}, v{u+1}\nv_cvt_pk_bf16_f32 v{12+p}, v{g}, v{g+1}\nv_cndmask_b32 v{12+p}, 0, v{12+p}, s[94:95]")
    for n in range(2): transpose(48, WD, 2, n, fs=2)
    e("s_lshl_b32 s60, s3, 11\nv_lshl_add_u32 v10, v1, 4, s60")
    for j in range(4): mfma16(80+4*j, 12, 48+2*j, None)
    e("s_mov_b32 exec_hi, 0")
    for j in range(4): e(f"ds_write_b128 v10, v[{80+4*j}:{80+4*j+3}] offset:{L_RD+512*j}")
    e("s_mov_b64 exec, s[92:93]")
    def lse(r, f): e(f"buffer_load_dwordx2 v[2:3], v4, {r}, s22 offen{f}")
    def opoll(r, f):
        for hf in range(2):
            for i in range(2): e(f"buffer_load_dwordx4 v[{OR_[hf]+4*i}:{OR_[hf]+4*i+3}], v0, {r}, s{20+hf} offen offset:{64*i}{f}")
        if not sent: lse(r, f)
    e(f"s_lshl_b32 s60, s3, 9\nv_lshl_add_u32 v11, v1, 3, s60")
    if not early:
        e("s_waitcnt vmcnt(0)")
        for n in range(4): transpose(BO, WO, 2, n)
    if pvw: spin("L_z", 16)
    stamp(7); (lse if sent else opoll)(*FA)
    e("v_mov_b32 v12, s32")
    def weights():
        e("v_max_f32_dpp v9, v2, v2 quad_perm:[1,0,3,2] row_mask:0xf bank_mask:0xf\nv_max_f32_dpp v9, v9, v9 quad_perm:[2,3,0,1] row_mask:0xf bank_mask:0xf")
        e("v_sub_f32 v2, v2, v9\nv_exp_f32 v2, v2\nv_add_f32_dpp v9, v2, v2 quad_perm:[1,0,3,2] row_mask:0xf bank_mask:0xf\nv_add_f32_dpp v9, v9, v9 quad_perm:[2,3,0,1] row_mask:0xf bank_mask:0xf\nv_rcp_f32 v9, v9\nv_mul_f32 v2, v2, v9")
    if sent:
        poll("L_g2", lse, [3], 9, sl2, first=False, du=dual)
        e("s_cbranch_execz L_t1"); opoll(*FA); e("L_t1:")
        weights()
        poll("L_g4", opoll, otags, 9, sl2, first=False, du=dual)
    else:
        poll("L_g4", opoll, otags + [3], 9, sl2, first=False, du=dual)
    stamp(8)
    for hf in range(2):
        a = OR_[hf]
        e(f"v_mov_b32 v{a+1}, v{a+2}\nv_mov_b32 v{a+2}, v{a+4}\nv_mov_b32 v{a+3}, v{a+6}")
    e("s_cbranch_execz L_m1")
    for hf in range(2):
        for j in range(4): mfma(24+16*hf+4*j, OR_[hf], BO+4*j, None)
    e("L_m1:")
    if not sent: weights()
    for hf in range(2):
        for r in range(4):
            for j in range(4):
                a = 24+16*hf+4*j+r; y = OR_[hf]+4+j
                e(f"v_{'mul' if r == 0 else 'fmac'}_f32_dpp v{y}, v2, v{a} row_newbcast:{4*hf+r} row_mask:0xf bank_mask:0xf")
        e(f"ds_write_b128 v10, v[{OR_[hf]+4}:{OR_[hf]+7}] offset:{L_R3+1024*hf}")
    e("s_waitcnt lgkmcnt(0)")
    skip("L_t2", "s_barrier")
    for w in range(4): e(f"ds_read_b64 v[{16+4*w}:{17+4*w}], v11 offset:{L_R3+2048*w}")
    for w in range(4): e(f"ds_read2st64_b32 v[{18+4*w}:{19+4*w}], v5 offset0:{L_RD//256+8*w} offset1:{L_RD//256+8*w+2}")
    e("s_waitcnt lgkmcnt(4)\nv_pk_add_f32 v[16:17], v[16:17], v[20:21]\nv_pk_add_f32 v[24:25], v[24:25], v[28:29]\ns_waitcnt lgkmcnt(0)")
    e("v_pk_add_f32 v[18:19], v[18:19], v[22:23]\nv_pk_add_f32 v[26:27], v[26:27], v[30:31]\nv_pk_add_f32 v[16:17], v[16:17], v[24:25]\nv_pk_add_f32 v[18:19], v[18:19], v[26:27]")
    embed(16, 12)
    if dry: e("s_cbranch_execz L_S_back")
    e("buffer_store_dwordx4 v[16:19], v8, s[44:47], s14 offen sc1")
    stamp(9)
    if stamps:
        e("s_cmp_lg_u32 s3, 0\ns_cbranch_scc1 L_end"); flush(0, 10)
    e("s_endpgm")
    e("L_A:\ns_sub_u32 s3, s3, 4\ns_setprio 1")
    KR = 16; VR = 48; S = 8; PG = 16; T = 32
    e("s_lshl_b32 s33, s6, 23\ns_lshl_b32 s60, s4, 20\ns_add_u32 s33, s33, s60\ns_lshl_b32 s60, s7, 16\ns_add_u32 s33, s33, s60\ns_lshl_b32 s60, s3, 13\ns_add_u32 s33, s33, s60\ns_add_u32 s33, s33, 0xc0000\ns_add_u32 s34, s33, 4096")
    e("v_lshlrev_b32 v2, 8, v6\nv_lshl_add_u32 v2, v7, 4, v2\nv_lshlrev_b32 v3, 10, v7\nv_lshl_add_u32 v3, v6, 4, v3")
    e("s_waitcnt lgkmcnt(0)")
    srd(36, 10, 0x4000000); srd(40, 12, 0x4000000); srd(44, 30, 0x10000000); srd(48, 8, 8192); srd(56, 26, 8192)
    e(f"s_lshl_b32 s18, s4, 8\ns_add_u32 s18, s18, {WS_P}\nv_and_b32 v82, 31, v1\nv_lshlrev_b32 v82, 3, v82")
    if tlb:
        e("s_lshr_b32 s60, s5, 3\ns_lshl_b32 s62, s4, 2\ns_add_u32 s60, s60, s62\ns_cmp_lg_u32 s3, 7\ns_cbranch_scc1 L_t6")
        e("v_lshlrev_b32 v84, 20, v1\nv_add_u32 v84, 0xf0000, v84\ns_mov_b64 exec, 0xc3f\nglobal_load_dword v84, v84, s[30:31]\ns_branch L_tk")
        e("L_t6:\ns_cmp_lg_u32 s3, 6\ns_cbranch_scc1 L_t5\nv_mov_b32 v84, s33\ns_mov_b64 exec, 1\nglobal_load_dword v84, v84, s[12:13]\ns_branch L_tk")
        e("L_t5:\ns_cmp_lg_u32 s3, 5\ns_cbranch_scc1 L_t4\ns_lshl_b32 s60, s60, 17\nv_mov_b32 v84, s60\ns_mov_b64 exec, 1\nglobal_load_dword v84, v84, s[16:17]\ns_branch L_tk")
        e("L_t4:\ns_cmp_lg_u32 s3, 4\ns_cbranch_scc1 L_tk\ns_mul_i32 s60, s60, 57344\nv_mov_b32 v84, s60\nv_mov_b32 v85, 0\ns_mov_b64 exec, 1\nglobal_load_dword v84, v84, s[24:25]\nglobal_load_dword v85, v85, s[26:27]")
        e("L_tk:\ns_mov_b64 exec, -1")
    for t in range(2):
        for d in range(4):
            if 4*t+d == k0:
                e("s_barrier\ns_load_dword s32, s[30:31], 0")
            e(f"buffer_load_dwordx4 v[{KR+16*t+4*d}:{KR+16*t+4*d+3}], v2, s[36:39], s{33+t} offen offset:{64*d}{nt_kv}")
    e(f"s_lshl_b32 s60, s4, 2\ns_add_u32 s60, s60, s3\ns_lshl_b32 s20, s60, 14\ns_lshl_b32 s21, s5, 9\ns_add_u32 s20, s20, s21\ns_add_u32 s20, s20, {WS_O}")
    e(f"s_lshl_b32 s21, s60, 8\ns_lshl_b32 s60, s5, 3\ns_add_u32 s21, s21, s60\ns_add_u32 s21, s21, {WS_LSE}")
    e(f"s_add_u32 s23, s20, {DELTA}\ns_add_u32 s24, s21, {DELTA}")
    e("s_lshl_b32 s22, s6, 10\ns_lshl_b32 s60, s4, 7\ns_add_u32 s22, s22, s60\ns_lshl_b32 s60, s7, 5\ns_add_u32 s22, s22, s60")
    e(f"s_lshl_b32 s84, s4, 17\ns_lshl_b32 s60, s6, 14\ns_add_u32 s84, s84, s60\ns_lshl_b32 s60, s7, 7\ns_add_u32 s84, s84, s60\ns_add_u32 s84, s84, {WS_F}")
    for i in range(1, 4): e(f"s_add_u32 s{84+i}, s84, {4096*i}")
    e("v_and_b32 v85, 7, v1\nv_lshlrev_b32 v84, 4, v85\nv_lshlrev_b32 v85, 2, v85\nv_lshrrev_b32 v86, 3, v1\nv_lshl_add_u32 v84, v86, 9, v84\nv_mov_b32 v87, 1")
    e(f"v_and_b32 v0, 3, v1\nv_mul_u32_u24 v2, 272, v0\nv_lshl_add_u32 v2, v7, 4, v2\nv_lshlrev_b32 v0, 5, v0\ns_mov_b32 s62, {SCALE}\ns_mov_b32 s63, {LOG2E}")
    e("s_lshl_b32 s60, s3, 2\nv_add_u32 v88, s60, v0\nv_mov_b32 v83, 0\ns_getreg_b32 s19, hwreg(HW_REG_XCC_ID, 0, 4)")
    e(f"s_lshl_b32 s60, s3, 11\nv_lshl_add_u32 v89, v1, 3, s60\nv_add_u32 v89, {L_RO}, v89\nv_add_u32 v90, 1024, v89")
    e("s_lshl_b32 s60, s3, 9\nv_lshl_add_u32 v91, v1, 3, s60\ns_lshl_b32 s60, s3, 5\nv_mov_b32 v92, s60\nv_lshlrev_b32 v93, 3, v1")
    e("s_waitcnt lgkmcnt(0)"); mktag(False)
    e("s_setprio 0"); pr(5)
    for i in range(8): e(f"buffer_load_dwordx4 v[{VR+4*i}:{VR+4*i+3}], v3, s[40:43], s{33+(i>>2)} offen offset:{256*(i&3)}{nt_v}")
    e(f"buffer_load_dwordx2 v[80:81], v82, s[44:47], s18 offen{fp}")
    if wov: e("s_mov_b64 exec, 1\nds_add_u32 v83, v87 offset:12\ns_mov_b64 exec, -1")
    e("s_setprio 2")
    stamp(1)
    if dryA == 2: e("ds_read_b32 v4, v83 offset:8\ns_waitcnt lgkmcnt(0)\nv_readfirstlane_b32 s60, v4\ns_cmp_ge_u32 s60, 4\ns_cbranch_scc1 L_qk")
    if dryA: e("s_mov_b64 s[92:93], 0\ns_mov_b64 exec, 0\ns_branch " + ("L_A_dry" if dryA == 2 else "L_A_tail"))
    e("L_A_back:\ns_mov_b64 s[92:93], -1\ns_mov_b64 exec, -1")
    e("L_qw:\n" + (f"s_sleep {slq}\n" if slq else "") + "ds_read_b32 v4, v83 offset:8\ns_waitcnt lgkmcnt(0)\nv_readfirstlane_b32 s60, v4\ns_cmp_lt_u32 s60, 4\ns_cbranch_scc1 L_qw\nL_qk:")
    stamp(0)
    pr(1)
    for d in range(4): e(f"ds_read_b128 v[{96+4*d}:{99+4*d}], v2 offset:{L_QL+64*d}")
    e("s_waitcnt vmcnt(9)\nL_A_dry:")
    for d in range(4):
        e(f"s_waitcnt lgkmcnt({3-d})")
        for t in range(2): mfma(S+4*t, KR+16*t+4*d, 96+4*d, None if d == 0 else S+4*t)
    def rbs():
        for k in range(4): e(f"v_cvt_pk_bf16_f32 v{S+2*k+1}, v{S+2*k}, v{S+2*k+1}")
        for k in range(4): e(f"v_lshlrev_b32 v{S+2*k}, 16, v{S+2*k+1}\nv_and_b32 v{S+2*k+1}, 0xffff0000, v{S+2*k+1}")
    rbs()
    for k in range(4): e(f"v_pk_mul_f32 v[{S+2*k}:{S+2*k+1}], v[{S+2*k}:{S+2*k+1}], s[62:63] op_sel_hi:[1,0]")
    rbs()
    e(f"v_max3_f32 v4, v{S}, v{S+1}, v{S+2}\nv_max3_f32 v5, v{S+3}, v{S+4}, v{S+5}\nv_max3_f32 v4, v4, v{S+6}, v{S+7}\nv_max_f32 v4, v4, v5")
    red_swap("v_max_f32", 4, 5, [16, 32])
    e("v_mul_f32 v0, s63, v4")
    for k in range(8): e(f"v_fma_f32 v{S+k}, v{S+k}, s63, -v0")
    for k in range(8): e(f"v_exp_f32 v{S+k}, v{S+k}")
    for k in range(4): e(f"v_cvt_pk_bf16_f32 v{T+k}, v{S+2*k}, v{S+2*k+1}")
    e(f"v_pk_add_f32 v[4:5], v[{S}:{S+1}], v[{S+2}:{S+3}]\nv_pk_add_f32 v[6:7], v[{S+4}:{S+5}], v[{S+6}:{S+7}]\nv_pk_add_f32 v[4:5], v[4:5], v[6:7]\nv_add_f32 v4, v4, v5")
    for g in range(4):
        m = 0x000F000F << (4*g)
        e(f"s_mov_b32 s66, {m}\ns_mov_b32 s67, {m}")
        for k in range(4): e(f"v_cndmask_b32 v{PG+4*g+k}, 0, v{T+k}, s[66:67]")
    red_swap("v_add_f32", 4, 5, [16, 32])
    e(f"s_and_b64 exec, s[92:93], 15\nds_write_b32 v88, v0 offset:{L_MX}\nds_write_b32 v88, v4 offset:{L_LS}\ns_mov_b64 exec, s[92:93]")
    stamp(2)
    for t in range(2):
        for n in (2*t, 2*t+1):
            e(f"s_waitcnt vmcnt({7-2*n})")
            if n == 3: stamp(3)
            transpose(T, VR, 4, n, fs=2, n0=2*t)
        for j in range(8): mfma16(S+4*(j&1), PG+4*(j>>1)+2*t, T+2*j, None if (j < 2 and t == 0) else S+4*(j&1))
    for h in range(4): e(f"ds_write2_b32 v{89+(h>>1)}, v{S+h}, v{S+4+h} offset0:{128*(h&1)} offset1:{128*(h&1)+1}")
    e("s_waitcnt lgkmcnt(0)\ns_and_b64 exec, s[92:93], 1\nds_add_u32 v83, v87 offset:16\ns_mov_b64 exec, s[92:93]")
    e("L_A_tail:\ns_cmp_ge_u32 s3, 4\ns_cbranch_scc1 L_A_hi")
    skip("L_a3", "s_waitcnt vmcnt(0)\nv_cmp_ne_u32 vcc, s19, v80\nv_cmp_ne_u32 s[62:63], s32, v81\ns_or_b64 s[62:63], vcc, s[62:63]\nL_pw:\nds_read_b32 v4, v83 offset:16\ns_waitcnt lgkmcnt(0)\nv_readfirstlane_b32 s60, v4\ns_cmp_lt_u32 s60, 8\ns_cbranch_scc1 L_pw")
    e(f"ds_read_b128 v[48:51], v92 offset:{L_MX}\nds_read_b128 v[52:55], v92 offset:{L_MX+16}\nds_read_b128 v[32:35], v92 offset:{L_LS}\nds_read_b128 v[36:39], v92 offset:{L_LS+16}")
    for w in range(8): e(f"ds_read_b64 v[{16+2*w}:{17+2*w}], v91 offset:{L_RO+2048*w}")
    e("v_mov_b32 v41, s32\nv_mov_b32 v43, s32")
    e("s_waitcnt lgkmcnt(10)\nv_max3_f32 v44, v48, v49, v50\nv_max3_f32 v45, v51, v52, v53\nv_max3_f32 v44, v44, v54, v55\nv_max_f32 v44, v44, v45")
    for w in range(8): e(f"v_sub_f32 v{48+w}, v{48+w}, v44")
    for w in range(8): e(f"v_exp_f32 v{48+w}, v{48+w}")
    e("s_waitcnt lgkmcnt(8)\nv_mul_f32 v32, v32, v48\nv_mul_f32 v33, v33, v49")
    for w in range(2, 8): e(f"v_fmac_f32 v{32+(w&1)}, v{32+w}, v{48+w}")
    e("v_add_f32 v32, v32, v33\nv_rcp_f32 v33, v32\nv_log_f32 v42, v32\ns_waitcnt lgkmcnt(0)")
    for w in range(2): e(f"v_pk_mul_f32 v[{16+2*w}:{17+2*w}], v[{16+2*w}:{17+2*w}], v[48:49] op_sel:[0,{w}] op_sel_hi:[1,{w}]")
    for w in range(2, 8): e(f"v_pk_fma_f32 v[{16+2*(w&1)}:{17+2*(w&1)}], v[{16+2*w}:{17+2*w}], v[{48+(w&6)}:{49+(w&6)}], v[{16+2*(w&1)}:{17+2*(w&1)}] op_sel:[0,{w&1},0] op_sel_hi:[1,{w&1},1]")
    e("v_pk_add_f32 v[16:17], v[16:17], v[18:19]\nv_add_f32 v42, v44, v42\nv_pk_mul_f32 v[16:17], v[16:17], v[32:33] op_sel:[0,1] op_sel_hi:[1,1]\nv_cvt_pk_bf16_f32 v40, v16, v17")
    e("s_cbranch_execz L_A_back")
    if dual: e(f"buffer_store_dwordx2 v[40:41], v93, s[44:47], s23 offen\ns_mov_b64 exec, 1\nbuffer_store_dwordx2 v[42:43], v93, s[44:47], s24 offen\ns_mov_b64 exec, -1\ns_cmp_eq_u64 s[62:63], 0\n" + ("" if force else "s_cbranch_scc1 L_end"))
    e(f"buffer_store_dwordx2 v[40:41], v93, s[44:47], s20 offen sc1\ns_mov_b64 exec, 1\nbuffer_store_dwordx2 v[42:43], v93, s[44:47], s21 offen sc1")
    e("s_endpgm")
    e("L_A_hi:\ns_cmp_eq_u32 s3, 4\ns_cbranch_scc1 L_A_fin")
    e("s_cbranch_execz L_A_back")
    if stamps:
        e("s_cmp_lg_u32 s3, 7\ns_cbranch_scc1 L_end"); flush(10, 14)
    e("s_endpgm\nL_A_fin:"); pr(2)
    skip("L_f0", "buffer_load_dword v14, v85, s[48:51], s22 offen\ns_setprio 3\ns_barrier" + (f"\ns_sleep {d3}" if d3 else ""))
    pr(3)
    def g3(r, f):
        for i in range(4): e(f"buffer_load_dwordx4 v[{16+4*i}:{19+4*i}], v84, s[44:47], s{84+i} offen sc1")
    poll("L_g3", g3, list(range(16, 32)), 12, sl3, emb=True)
    stamp(0)
    strip(range(16, 32))
    for a, b in ((16, 20), (24, 28), (16, 24)): e(f"v_pk_add_f32 v[{a}:{a+1}], v[{a}:{a+1}], v[{b}:{b+1}]\nv_pk_add_f32 v[{a+2}:{a+3}], v[{a+2}:{a+3}], v[{b+2}:{b+3}]")
    for k in range(4): e(f"v_add_f32_dpp v{16+k}, v{16+k}, v{16+k} row_ror:8 row_mask:0xf bank_mask:0xf")
    for w in (16, 32):
        for k in range(4): e(f"v_mov_b32 v{20+k}, v{16+k}")
        for k in range(4): e(f"v_permlane{w}_swap_b32 v{16+k}, v{20+k}")
        e("v_pk_add_f32 v[18:19], v[18:19], v[22:23]\nv_pk_add_f32 v[16:17], v[16:17], v[20:21]")
    def rb2(a): e(f"v_cvt_pk_bf16_f32 v{a+1}, v{a}, v{a+1}\nv_lshlrev_b32 v{a}, 16, v{a+1}\nv_and_b32 v{a+1}, 0xffff0000, v{a+1}")
    rb2(18)
    e("v_mul_f32 v20, 0xbfb8aa3b, v18\nv_mul_f32 v21, 0xbfb8aa3b, v19\nv_exp_f32 v20, v20\nv_exp_f32 v21, v21"); rb2(16)
    e("v_add_f32 v20, 1.0, v20\nv_add_f32 v21, 1.0, v21\nv_rcp_f32 v20, v20\nv_rcp_f32 v21, v21\nv_and_b32 v15, 0xffff0000, v14\nv_lshlrev_b32 v14, 16, v14\nv_pk_mul_f32 v[18:19], v[18:19], v[20:21]"); rb2(18)
    e("v_pk_mul_f32 v[16:17], v[16:17], v[18:19]"); rb2(16)
    e("v_pk_add_f32 v[16:17], v[16:17], v[14:15]\nv_cvt_pk_bf16_f32 v16, v16, v17")
    e("s_cbranch_execz L_A_back")
    e(f"s_mov_b64 exec, 0xff\nbuffer_store_dword v16, v85, s[56:59], s22 offen{st_out}")
    e("s_cmp_lg_u32 s2, 0\ns_cbranch_scc1 L_fin\ns_mov_b64 exec, 1\nv_mov_b32 v18, s32\nv_mov_b32 v17, 0\nbuffer_store_dword v18, v17, s[44:47], 0 offen sc1\nL_fin:")
    if stamps:
        e("s_waitcnt vmcnt(0)"); stamp(1); flush(14, 16)
    if probe:
        pr(4)
        e("s_memrealtime s[74:75]\ns_waitcnt lgkmcnt(0)\ns_sub_u32 s72, s72, s70\ns_add_u32 s72, s72, s74\nL_spin:\ns_memrealtime s[74:75]\ns_waitcnt lgkmcnt(0)\ns_sub_u32 s60, s74, s72\ns_cmp_lt_i32 s60, 0\ns_cbranch_scc1 L_spin")
    e("L_end:\ns_endpgm\nL_codeend:")
    body = pad_hazards(L)
    tail = f""".section .rodata,"a"
.p2align 6
.amdhsa_kernel {NAME}_kernel
  .amdhsa_next_free_vgpr {nv}
  .amdhsa_next_free_sgpr 100
  .amdhsa_accum_offset {nv}
  .amdhsa_group_segment_fixed_size 0
  .amdhsa_kernarg_size 96
  .amdhsa_user_sgpr_count 2
  .amdhsa_user_sgpr_kernarg_segment_ptr 1
  .amdhsa_system_sgpr_workgroup_id_x 1
.end_amdhsa_kernel
"""
    return HDR + "\n".join(body) + "\n" + tail
if __name__ == "__main__":
    open(f"cdna_kernels/{NAME}.s", "w").write(gen())
    V = dict(a=dict(), b=dict(d1=12), c=dict(wov=False), d=dict(pf=0x38), e=dict(d3=24), f=dict(sl2=4, slq=1))
    for k, kw in V.items(): open(f"k_{k}.s", "w").write(gen(stamps=True, **kw))
```

```python
import sys
sys.path.insert(0, "work")
from asmlib import pad_hazards
NAME = "recurrent_scan__sliding_block_cached__glu_gated_reglu__decode"
HDR = open(f"cdna_kernels/{NAME}.s.ref").read().split("; Override launch")[0]
WS_Q, WS_GU, WS_O, WS_LSE, WS_F = 0x10000, 0x100000, 0x200000, 0x300000, 0x400000
L_CNT, L_MX, L_LS, L_QL, L_HL, L_XN, L_R1, L_RO, L_R3, L_RD = 0, 128, 256, 512, 1664, 2944, 11264, 19456, 35840, 11264
LDS_SIZE = 44032
DELTA = 0x800000
WS_P = 0x8000
LOG2E = 0x3fb8aa3b; SCALE = 0x3db504f3
def gen(stamps=False, nt_w=" nt", nt_kv=" nt", nt_v=None, nt_o=None, nv=112, pf=False, dry=False, sl1=8, sl2=2, sl3=1, d1=32, sent=False, dual=True, dualq=True, k0=0, ack=True, msk=15, late=False, force=False, dryA=0, fa=' nt', fg='', fp='', b0e=True, wov=True, slq=0, tlb=0, exp=0, nt_x='', d3=16, probe=0, early=False, pvw=True, st_out='', mq=7, lw=0, th=8, oe=False, bal=2, pw=1, f2=0, nf=2, pp=0, zc=8, thv=8, gi=0, wf=0):
    L = []
    if nt_v is None: nt_v = nt_kv
    if nt_o is None: nt_o = nt_w
    def e(s):
        for x in s.split("\n"): L.append(x)
    def stamp(i):
        if stamps: e(f"s_memrealtime s[{70+2*i}:{71+2*i}]")
    def flush(lo, hi):
        if not stamps: return
        e("s_waitcnt lgkmcnt(0)\ns_mov_b64 exec, 1\ns_lshl_b32 s60, s2, 7\ns_add_u32 s60, s60, 0x8000000\nv_mov_b32 v2, 0")
        for i in range(lo, hi):
            e(f"v_mov_b32 v4, s{70+2*(i-lo)}\nv_mov_b32 v5, s{71+2*(i-lo)}\nbuffer_store_dwordx2 v[4:5], v2, s[44:47], s60 offen offset:{8*i}")
    def srd(d, p, n): e(f"s_mov_b32 s{d}, s{p}\ns_mov_b32 s{d+1}, s{p+1}\ns_mov_b32 s{d+2}, {n}\ns_mov_b32 s{d+3}, 0x20000")
    def red_swap(op, v, t, which):
        for w in which: e(f"v_mov_b32 v{t}, v{v}\nv_permlane{w}_swap_b32 v{v}, v{t}\n{op} v{v}, v{v}, v{t}")
    def rb(v): e(f"v_cvt_pk_bf16_f32 v{v}, v{v}, v{v}\nv_and_b32 v{v}, 0xffff0000, v{v}")
    def lds_sync(cnt, lab, va, vt):
        e(f"s_waitcnt lgkmcnt(0)\nv_mov_b32 v{va}, 0\nv_mov_b32 v{vt}, 1\ns_mov_b64 exec, 1\nds_add_u32 v{va}, v{vt} offset:{cnt}\ns_mov_b64 exec, -1")
        e(f"{lab}:\nds_read_b32 v{vt}, v{va} offset:{cnt}\ns_waitcnt lgkmcnt(0)\nv_readfirstlane_b32 s60, v{vt}\ns_cmp_lt_u32 s60, 4\ns_cbranch_scc1 {lab}")
    def alt(on):
        if on: e(f"s_add_u32 s96, s30, {DELTA}\ns_addc_u32 s97, s31, 0")
    FB = ("s[44:47]", " sc1")
    FA = ("s[96:99]", fa)
    def poll(lab, loads, tags, acc, sl, first=True, du=False, emb=False, w0=0, nowait=False, m=None):
        if first:
            e(f"s_cbranch_execz {lab}d"); loads(*(FA if du else FB))
        if nowait: e(f"s_branch {lab}d")
        if w0: e(f"s_cbranch_execz {lab}d\ns_waitcnt vmcnt({w0})\ns_branch {lab}d")
        e(f"s_cbranch_execz {lab}d\ns_branch {lab}c\n{lab}r:\ns_mov_b64 exec, vcc\ns_sub_u32 s61, s61, 1\ns_cmp_lt_i32 s61, 0\ns_cbranch_scc1 {lab}k")
        if sl: e(f"s_sleep {sl}")
        if du:
            e(f"s_and_b32 s60, s61, {m or msk}\ns_cbranch_scc1 {lab}a"); loads(*FB); e(f"s_branch {lab}c\n{lab}a:"); loads(*FA)
        else: loads(*FB)
        e(f"{lab}c:\ns_waitcnt vmcnt(0)\n{lab}d:\nv_xor_b32 v{acc}, s32, v{tags[0]}")
        for k, t in enumerate(tags[1:]): e(f"v_bitop3_b32 v{acc}, v{acc}, v{t}, s{(32, 9, 10, 11)[(k+1) & 3] if emb else 32} bitop3:0xf6")
        if emb: e(f"v_and_b32 v{acc}, 0xff, v{acc}")
        e(f"v_cmp_ne_u32 vcc, 0, v{acc}\ns_cbranch_vccnz {lab}r\n{lab}k:\ns_mov_b64 exec, s[92:93]")
    def mktag(sel):
        e("s_mul_i32 s32, s32, 1664525\ns_add_u32 s32, s32, 1013904223\ns_lshr_b32 s9, s32, 8\ns_lshr_b32 s10, s32, 16\ns_lshr_b32 s11, s32, 24")
        if sel:
            for k in range(4): e(f"s_mov_b32 s{26+k}, {0x07060500+k}")
    def embed(d, vt):
        for k in range(4): e(f"v_perm_b32 v{d+k}, v{d+k}, v{vt}, s{26+k}")
    def strip(rs):
        for r in rs: e(f"v_and_b32 v{r}, 0xffffff00, v{r}")
    def transpose(dst, src, rw, n, fs=4, n0=0):
        for j in range(2*rw):
            e(f"v_perm_b32 v{dst+fs*j+n-n0}, v{src+rw*(2*n+1)+(j>>1)}, v{src+rw*(2*n)+(j>>1)}, s{64+(j&1)}")
    def mfma(d, a, b, c): e(f"v_mfma_f32_16x16x32_bf16 v[{d}:{d+3}], v[{a}:{a+3}], v[{b}:{b+3}], " + ("0" if c is None else f"v[{c}:{c+3}]"))
    def mfma16(d, a, b, c): e(f"v_mfma_f32_16x16x16_bf16 v[{d}:{d+3}], v[{a}:{a+1}], v[{b}:{b+1}], " + ("0" if c is None else f"v[{c}:{c+3}]"))
    def ptab(lab):
        e(f"s_getreg_b32 s19, hwreg(HW_REG_XCC_ID, 0, 4)\ns_lshl_b32 s18, s4, 8\ns_add_u32 s18, s18, {WS_P}")
        e(f"s_cmp_lg_u32 s3, 0\ns_cbranch_scc1 {lab}\ns_lshl_b32 s60, s5, 3\nv_mov_b32 v84, s60\nv_mov_b32 v86, s19\nv_mov_b32 v87, s32\ns_mov_b64 exec, 1\nbuffer_store_dwordx2 v[86:87], v84, s[44:47], s18 offen\ns_mov_b64 exec, -1\n{lab}:")
    def skip(lab, code):
        e(f"s_cbranch_execz {lab}"); e(code); e(f"{lab}:")

    e(f"; @launch grid=(256,1,1) block=(768,1,1) lds={LDS_SIZE}")
    e('.amdgcn_target "amdgcn-amd-amdhsa--gfx950"\n.text')
    e(f".globl {NAME}_kernel\n.p2align 8\n.type {NAME}_kernel,@function\n{NAME}_kernel:")
    stamp(0)
    if probe: e("s_memrealtime s[70:71]")
    def pr(n):
        if probe == n: e("s_memrealtime s[72:73]")
    e("s_cmp_ge_u32 s2, 256\ns_cbranch_scc1 L_end")
    e("s_load_dwordx16 s[8:23], s[0:1], 0\ns_load_dwordx8 s[24:31], s[0:1], 64")
    if pf:
        e(f"s_and_b32 s3, s2, {pf}\ns_cbranch_scc1 L_nopf\nv_cmp_gt_u32 vcc, (L_codeend-L_pc)/128, v0\ns_cbranch_vccz L_nopf\ns_getpc_b64 s[56:57]\nL_pc:")
        e("s_mov_b64 exec, vcc\nv_lshlrev_b32 v2, 7, v0\nv_mov_b32 v3, s57\nv_add_co_u32 v2, vcc, s56, v2\nv_addc_co_u32 v3, vcc, 0, v3, vcc\nglobal_load_dword v95, v[2:3], off\ns_mov_b64 exec, -1\nL_nopf:")
    e("v_lshrrev_b32 v2, 6, v0\nv_and_b32 v1, 63, v0\nv_readfirstlane_b32 s3, v2")
    e("s_and_b32 s4, s2, 7\ns_lshr_b32 s5, s2, 3\ns_lshr_b32 s6, s5, 2\ns_and_b32 s7, s5, 3")
    e("s_mov_b32 s64, 0x05040100\ns_mov_b32 s65, 0x07060302\ns_mov_b32 s61, 20000\ns_mov_b64 s[92:93], -1")
    e("v_and_b32 v6, 15, v1\nv_lshrrev_b32 v7, 4, v1")
    e("s_cmp_ge_u32 s3, 4\ns_cbranch_scc1 L_A")
    e("s_setprio 3")
    W = 24
    e("v_mov_b32 v2, 0\nv_mov_b32 v3, 0\nds_write2_b64 v2, v[2:3], v[2:3] offset0:0 offset1:1\nds_write_b64 v2, v[2:3] offset:16")
    e("v_lshlrev_b32 v8, 5, v1\ns_lshl_b32 s33, s3, 11")
    e("v_lshrrev_b32 v5, 5, v1\nv_lshlrev_b32 v5, 2, v5\nv_bfe_u32 v11, v1, 1, 4\nv_lshl_add_u32 v5, v11, 4, v5\nv_and_b32 v11, 1, v1\nv_lshl_add_u32 v5, v11, 10, v5")
    e("s_lshr_b32 s60, s3, 1\ns_lshl_b32 s60, s60, 8\ns_and_b32 s62, s3, 1\ns_lshl_b32 s62, s62, 3\ns_add_u32 s60, s60, s62\nv_add_u32 v5, s60, v5\nv_and_b32 v3, 1, v7\nv_lshlrev_b32 v3, 2, v3\nv_lshl_add_u32 v3, v6, 4, v3\nv_lshrrev_b32 v11, 5, v1\nv_lshl_add_u32 v3, v11, 12, v3\nv_add_u32 v3, s60, v3")
    e(f"s_lshl_b32 s90, s4, 15\ns_lshl_b32 s60, s6, 12\ns_add_u32 s90, s90, s60\ns_lshl_b32 s60, s3, 9\ns_add_u32 s90, s90, s60\ns_add_u32 s90, s90, {WS_Q}")
    e("v_and_b32 v13, 31, v1\nv_lshlrev_b32 v13, 4, v13\nv_lshl_add_u32 v0, v11, 11, v13")
    e("s_cmp_eq_u32 s4, 0\ns_cselect_b32 s91, s5, 0\ns_lshl_b32 s91, s91, 1\ns_andn2_b32 s91, s91, 31" if bal else "s_mov_b32 s91, s5")
    e("s_cmp_ge_u32 s91, 30\ns_cbranch_scc1 L_S_nop1")
    e("s_cmp_ge_u32 s5, 16\ns_cbranch_scc1 L_S_ffn")
    e("s_mov_b32 s34, 8192\ns_lshr_b32 s60, s5, 1\ns_lshl_b32 s35, s4, 3\ns_add_u32 s35, s35, s60\ns_and_b32 s62, s5, 1")
    e(f"s_lshl_b32 s66, s4, 15\ns_lshl_b32 s67, s62, 11\ns_add_u32 s66, s66, s67\ns_lshl_b32 s67, s60, 8\ns_add_u32 s66, s66, s67\ns_add_u32 s66, s66, {WS_Q}\ns_mov_b32 s67, 4096")
    e("s_waitcnt lgkmcnt(0)")
    srd(36, 14, 0x400000)
    e("s_branch L_S_p1")
    e("L_S_ffn:")
    e(f"s_mov_b32 s34, 3584\ns_mul_i32 s60, s4, {16 if bal else 14}\ns_add_u32 s60, s60, s5\ns_sub_u32 s60, s60, {32 if bal else 16}")
    e("s_lshr_b32 s35, s60, 2\ns_lshr_b32 s62, s60, 1\ns_and_b32 s62, s62, 1\ns_and_b32 s63, s60, 1")
    if gi: e(f"s_mul_i32 s66, s62, 14336\ns_lshl_b32 s67, s63, 6\ns_add_u32 s66, s66, s67\ns_lshl_b32 s67, s35, 9\ns_add_u32 s66, s66, s67\ns_add_u32 s66, s66, {WS_GU}\ns_mov_b32 s67, 28672")
    else: e(f"s_lshl_b32 s66, s63, 1\ns_add_u32 s66, s66, s62\ns_mul_i32 s66, s66, 7168\ns_lshl_b32 s67, s35, 8\ns_add_u32 s66, s66, s67\ns_add_u32 s66, s66, {WS_GU}\ns_mov_b32 s67, 28672")
    e("s_waitcnt lgkmcnt(0)")
    e("s_cmp_eq_u32 s63, 0\ns_cselect_b32 s36, s20, s22\ns_cselect_b32 s37, s21, s23\ns_mov_b32 s38, 0x1c0000\ns_mov_b32 s39, 0x20000")
    e("L_S_p1:")
    srd(40, 8, 8192)
    e(f"buffer_load_dwordx4 v[16:19], v8, s[40:43], s33 offen{nt_x}\nbuffer_load_dwordx4 v[20:23], v8, s[40:43], s33 offen offset:16{nt_x}")
    e("s_lshl_b32 s60, s34, 3\nv_mul_lo_u32 v9, v7, s60\nv_lshl_add_u32 v9, v6, 3, v9")
    e("s_lshl_b32 s63, s62, 2\ns_add_u32 s63, s63, s3\ns_lshl_b32 s68, s63, 6\ns_mul_i32 s68, s68, s34\ns_lshl_b32 s35, s35, 7\ns_add_u32 s68, s68, s35\ns_mul_i32 s69, s34, 25")
    if b0e: e("s_barrier")
    for st in range(2):
        for i in range(8):
            r = W + 16*st + 2*i
            if not exp & 4: e(f"buffer_load_dwordx2 v[{r}:{r+1}], v9, s[36:39], s68 offen{nt_w}")
            if i < 7: e("s_add_u32 s68, s68, s34")
        if st == 0: e("s_add_u32 s68, s68, s69")
    e("s_load_dword s32, s[30:31], 0")
    srd(44, 30, 0x10000000); srd(96, 30, 0x8000000); alt(True)
    if not b0e: e("s_barrier")
    stamp(1)
    e("s_waitcnt vmcnt(16)")
    X = 56
    for k in range(8): e(f"v_lshlrev_b32 v{X+2*k}, 16, v{16+k}\nv_and_b32 v{X+2*k+1}, 0xffff0000, v{16+k}")
    def red32(v, t):
        for r in (8, 4, 2, 1): e(f"v_add_f32_dpp v{v}, v{v}, v{v} row_ror:{r} row_mask:0xf bank_mask:0xf")
        red_swap("v_add_f32", v, t, [16])
    e(f"v_add_f32 v10, v{X}, v{X+1}\nv_add_f32 v11, v{X+2}, v{X+3}")
    for k in range(4, 16, 2): e(f"v_add_f32 v10, v10, v{X+k}\nv_add_f32 v11, v11, v{X+k+1}")
    e("v_add_f32 v10, v10, v11"); red32(10, 11)
    e("v_mul_f32 v10, 0x3b000000, v10\nv_mov_b32 v12, 0\nv_mov_b32 v13, 0")
    for k in range(0, 16, 2): e(f"v_sub_f32 v14, v{X+k}, v10\nv_sub_f32 v15, v{X+k+1}, v10\nv_fmac_f32 v12, v14, v14\nv_fmac_f32 v13, v15, v15")
    e("v_add_f32 v12, v12, v13"); red32(12, 13)
    e("v_mul_f32 v12, 0x3b000000, v12"); rb(12); rb(10)
    e("v_add_f32 v12, 0x3727c5ac, v12"); rb(12)
    e("v_sqrt_f32 v12, v12"); rb(12)
    e("v_rcp_f32 v12, v12")
    for k in range(8):
        a, b = X+2*k, X+2*k+1
        e(f"v_sub_f32 v{a}, v{a}, v10\nv_sub_f32 v{b}, v{b}, v10\nv_cvt_pk_bf16_f32 v{b}, v{a}, v{b}\nv_lshlrev_b32 v{a}, 16, v{b}\nv_and_b32 v{b}, 0xffff0000, v{b}")
        e(f"v_mul_f32 v{a}, v{a}, v12\nv_mul_f32 v{b}, v{b}, v12\nv_cvt_pk_bf16_f32 v{16+k}, v{a}, v{b}")
    e("v_lshrrev_b32 v10, 5, v1\nv_lshl_add_u32 v10, v10, 4, v8\ns_mul_i32 s60, s3, 2080\nv_add_u32 v10, s60, v10")
    e(f"ds_write_b128 v10, v[16:19] offset:{L_XN}\nds_write_b128 v10, v[20:23] offset:{L_XN+16}")
    e("v_and_b32 v10, 7, v1\nv_mul_u32_u24 v10, 1040, v10\nv_lshl_add_u32 v10, v7, 4, v10\ns_lshl_b32 s60, s63, 7\nv_add_u32 v10, s60, v10")
    lds_sync(L_CNT, "L_sync0", 11, 12)
    e(f"ds_read_b128 v[16:19], v10 offset:{L_XN}\nds_read_b128 v[20:23], v10 offset:{L_XN+64}")
    stamp(2)
    B = 56; ACC = 24
    for st in range(2):
        e(f"s_waitcnt vmcnt({8-8*st})")
        for n in range(4): transpose(B, W+16*st, 2, n)
        if st == 0: e("s_waitcnt lgkmcnt(0)")
        for j in range(4): mfma(ACC+4*j, 16+4*st, B+4*j, None if st == 0 else ACC+4*j)
    e("s_lshl_b32 s60, s3, 11\nv_lshl_add_u32 v10, v1, 4, s60\ns_mov_b32 exec_hi, 0")
    for j in range(4): e(f"ds_write_b128 v10, v[{ACC+4*j}:{ACC+4*j+3}] offset:{L_R1+512*j}")
    e("s_mov_b32 exec_hi, -1"); mktag(True)
    e("s_mul_i32 s60, s3, s67\ns_lshl_b32 s60, s60, 1\ns_add_u32 s66, s66, s60\nv_and_b32 v10, 1, v7\nv_mul_lo_u32 v10, v10, s67\nv_lshl_add_u32 v10, v6, 4, v10\nv_mov_b32 v9, s32")
    if gi: e("s_lshr_b32 s60, s67, 8\ns_and_b32 s60, s60, 64\nv_lshrrev_b32 v11, 2, v6\nv_mad_u32_u24 v10, v11, s60, v10")
    lds_sync(L_CNT+4, "L_sync1", 11, 12)
    for w in range(2):
        for p in range(2): e(f"ds_read2st64_b32 v[{16+4*w+2*p}:{17+4*w+2*p}], v3 offset0:{L_R1//256+8*w+4*p} offset1:{L_R1//256+8*w+4*p+2}")
    e("s_waitcnt lgkmcnt(0)\nv_pk_add_f32 v[16:17], v[16:17], v[20:21]\nv_pk_add_f32 v[18:19], v[18:19], v[22:23]")
    for k in range(4): e(f"v_mov_b32 v{20+k}, v{16+k}")
    for k in range(4): e(f"v_permlane32_swap_b32 v{16+k}, v{20+k}")
    e("v_pk_add_f32 v[16:17], v[16:17], v[20:21]\nv_pk_add_f32 v[18:19], v[18:19], v[22:23]"); embed(16, 9)
    e("s_mov_b32 exec_hi, 0")
    if dualq: e("s_cmp_ge_u32 s5, 16\ns_cbranch_scc1 L_S_nq\nbuffer_store_dwordx4 v[16:19], v10, s[96:99], s66 offen\nL_S_nq:")
    else: e("buffer_store_dwordx4 v[16:19], v10, s[44:47], s66 offen sc1")
    e("s_mov_b32 exec_hi, -1")
    e("s_branch L_S_gather")
    e("L_S_nop1:\ns_waitcnt lgkmcnt(0)\ns_load_dword s32, s[30:31], 0")
    srd(44, 30, 0x10000000); srd(96, 30, 0x8000000); alt(True)
    e("s_barrier")
    stamp(1); stamp(2)
    e("s_waitcnt lgkmcnt(0)"); mktag(True)
    e("v_mov_b32 v10, 0\ns_mov_b32 s66, 0")
    for k in range(16, 20): e(f"v_mov_b32 v{k}, 0")
    e("s_sleep 64\nL_S_gather:")
    stamp(3)
    def g1(r, f, v=14): e(f"buffer_load_dwordx4 v[20:23], v{v}, {r}, s90 offen{f}")
    if d1: e(f"s_sleep {d1}")
    if exp & 8: stamp(1)
    g1(*(FA if dualq else FB), v=0)
    if dualq: e("s_cmp_ge_u32 s91, 30\ns_cbranch_scc1 L_S_ns\ns_mov_b32 exec_hi, 0\nbuffer_store_dwordx4 v[16:19], v10, s[44:47], s66 offen sc1\ns_mov_b32 exec_hi, -1\nL_S_ns:")
    e("v_mov_b32 v14, v0")
    e("s_lshr_b32 s34, s5, 3\ns_lshl_b32 s60, s4, 2\ns_add_u32 s34, s34, s60\ns_and_b32 s35, s5, 7")
    e(f"s_lshl_b32 s20, s34, 14\ns_lshl_b32 s60, s3, 7\ns_add_u32 s20, s20, s60\ns_add_u32 s20, s20, {WS_O}\ns_add_u32 s21, s20, 8192\ns_lshl_b32 s22, s34, 8\ns_add_u32 s22, s22, {WS_LSE}")
    e(f"s_lshl_b32 s14, s35, 17\ns_lshl_b32 s60, s3, 15\ns_add_u32 s14, s14, s60\ns_lshl_b32 s60, s34, 9\ns_add_u32 s14, s14, s60\ns_add_u32 s14, s14, {WS_F}")
    e("v_lshlrev_b32 v0, 9, v6\nv_lshl_add_u32 v0, v7, 4, v0\nv_and_b32 v4, 4, v6\nv_lshlrev_b32 v4, 2, v4\nv_and_b32 v8, 3, v6\nv_add_u32 v4, v4, v8\nv_lshl_add_u32 v4, v7, 2, v4\nv_lshlrev_b32 v4, 3, v4")
    e("v_lshrrev_b32 v11, 5, v1\nv_and_b32 v13, 31, v1\nv_lshlrev_b32 v13, 4, v13\nv_lshl_add_u32 v8, v11, 14, v13")
    e("s_lshl_b32 s60, s3, 4\nv_lshl_add_u32 v15, v7, 2, s60" + ("" if bal == 2 else "\nv_cmp_gt_u32 s[94:95], 56, v15\nv_min_u32 v15, 52, v15"))
    e(f"v_and_b32 v9, 7, v6\nv_mul_u32_u24 v9, 28672, v9\nv_lshrrev_b32 v10, 3, v6\nv_mul_u32_u24 v10, {14336 if gi else 7168}, v10\nv_add_u32 v9, v9, v10\nv_lshl_add_u32 v9, v15, 2, v9")
    if gi: assert bal == 2; e("s_lshl_b32 s60, s3, 6\nv_add_u32 v9, s60, v9")
    e("v_lshlrev_b32 v15, 10, v15\nv_lshl_add_u32 v15, v6, 3, v15")
    if bal == 2: e(f"s_max_u32 s60, s34, 4\ns_sub_u32 s60, s60, 4\ns_lshl_b32 s12, s60, {9 if gi else 8}\ns_add_u32 s12, s12, {WS_GU}\ns_add_u32 s13, s12, {64 if gi else 14336}\ns_lshl_b32 s33, s35, 7\ns_lshl_b32 s23, s60, 16\ns_add_u32 s23, s23, s33")
    else: e(f"s_mul_i32 s12, s34, 224\ns_add_u32 s12, s12, {WS_GU}\ns_add_u32 s13, s12, 14336\ns_lshl_b32 s33, s35, 7\ns_mul_i32 s23, s34, 57344\ns_add_u32 s23, s23, s33")
    e("s_mul_i32 s60, s3, 272\nv_lshl_add_u32 v13, v1, 3, s60")
    srd(48, 16, 0x400000); srd(52, 24, 0x1c0000)
    if dualq: e("s_waitcnt vmcnt(1)\ns_cmp_lt_u32 s91, 30\ns_cbranch_scc1 L_g1d")
    poll("L_g1", g1, [20, 21, 22, 23], 12, sl1, emb=True, first=False, du=dualq, m=mq)
    stamp(4)
    strip(range(20, 24))
    for k in range(4): e(f"v_mov_b32 v{80+k}, v{20+k}")
    for k in range(4): e(f"v_permlane32_swap_b32 v{80+k}, v{20+k}")
    e("v_pk_add_f32 v[80:81], v[80:81], v[20:21]\nv_pk_add_f32 v[82:83], v[82:83], v[22:23]\nv_cvt_pk_bf16_f32 v20, v80, v81\nv_cvt_pk_bf16_f32 v21, v82, v83")
    e(f"s_mov_b32 exec_hi, 0\nds_write_b64 v13, v[20:21] offset:{L_QL}\ns_mov_b32 exec_hi, -1")
    e("v_mov_b32 v2, 0\nv_mov_b32 v12, 1\ns_mov_b64 exec, 1\ns_waitcnt lgkmcnt(0)\nds_add_u32 v2, v12 offset:8\ns_mov_b64 exec, -1")
    e("v_lshlrev_b32 v11, 14, v7\nv_lshl_add_u32 v11, v6, 3, v11")
    e("s_lshl_b32 s66, s34, 17\ns_lshl_b32 s60, s3, 11\ns_add_u32 s66, s66, s60\ns_add_u32 s66, s66, s33\ns_add_u32 s67, s66, 8192\ns_add_u32 s68, s66, 65536\ns_add_u32 s69, s66, 73728")
    WO = 24; WD = 40; BO = 56
    OR_ = (16, 72); YR = (88, 92) if pp else (20, 76); LW = 13 if pp else 2; FR = 56 if pp else 16
    ptab("L_p1")
    def wld(p=3):
        for i in range(4 if p & 1 else 0): e(f"buffer_load_dwordx2 v[{WD+2*i}:{WD+2*i+1}], v15, s[52:55], s23 offen offset:{1024*i}{nt_o}")
        for i in range(8 if p & 2 else 0): e(f"buffer_load_dwordx2 v[{WO+2*i}:{WO+2*i+1}], v11, s[48:51], s{66+(i>>1)} offen offset:{1024*(i&1)}{nt_o}")
    def spin(lab, off, n=8): e(f"{lab}w:\nds_read_b32 v12, v2 offset:{off}\ns_waitcnt lgkmcnt(0)\nv_readfirstlane_b32 s60, v12\ns_cmp_ge_u32 s60, {n}\ns_cbranch_scc1 {lab}k\ns_sleep 1\ns_branch {lab}w\n{lab}k:")
    if early: wld()
    if wov: spin("L_v", {3: 20, 4: 16}.get(lw, 12), th if lw == 3 else thv)
    stamp(5)
    def gu(r, f): e(f"buffer_load_dwordx4 v[80:83], v9, {r}, s12 offen{f}\nbuffer_load_dwordx4 v[84:87], v9, {r}, s13 offen{f}")
    if bal == 2:
        assert not early
        if wf: wld(2)
        e("s_cmp_eq_u32 s4, 0\ns_cbranch_scc1 L_x0")
        if wf == 2: wld(1); gu("s[44:47]", fg)
        else: gu("s[44:47]", fg); wld(1)
        e("L_x0:")
        if lw not in (1, 2, 5) and not wf: wld(2)
    else:
        gu("s[44:47]", fg)
        if not early: wld(1 if lw in (1, 2, 5) else 3)
    if lw == 5: spin("L_y", 20, th); wld(2)
    stamp(6)
    otags = [r+k for r in OR_ for k in (1, 3, 5, 7)]
    if early:
        e("s_waitcnt vmcnt(2)")
        for n in range(4): transpose(BO, WO, 2, n)
    e("s_lshl_b32 s60, s3, 11\nv_lshl_add_u32 v10, v1, 4, s60")
    if bal == 2:
        e("s_cmp_lg_u32 s4, 0\ns_cbranch_scc1 L_x1")
        for r in range(80, 96): e(f"v_mov_b32 v{r}, 0")
        e("s_branch L_x2\nL_x1:")
    poll("L_g5", gu, list(range(80, 88)), 12, sl1, first=False, emb=True, w0=0 if early or wf or lw in (1, 2) else 8)
    strip(range(80, 88))
    for r in range(80, 88): e(f"v_add_f32_dpp v{r}, v{r}, v{r} row_ror:8 row_mask:0xf bank_mask:0xf")
    for p in range(2):
        g, u = 80+2*p, 84+2*p
        e(f"v_max_f32 v{g}, 0, v{g}\nv_max_f32 v{g+1}, 0, v{g+1}\nv_cvt_pk_bf16_f32 v{g}, v{g}, v{g+1}\nv_cvt_pk_bf16_f32 v{u}, v{u}, v{u+1}")
        e(f"v_and_b32 v{g+1}, 0xffff0000, v{g}\nv_lshlrev_b32 v{g}, 16, v{g}\nv_and_b32 v{u+1}, 0xffff0000, v{u}\nv_lshlrev_b32 v{u}, 16, v{u}")
        e(f"v_mul_f32 v{g}, v{g}, v{u}\nv_mul_f32 v{g+1}, v{g+1}, v{u+1}\nv_cvt_pk_bf16_f32 v{12+p}, v{g}, v{g+1}" + ("" if bal == 2 else f"\nv_cndmask_b32 v{12+p}, 0, v{12+p}, s[94:95]"))
    for n in range(2): transpose(48, WD, 2, n, fs=2)
    for j in range(4): mfma16(80+4*j, 12, 48+2*j, None)
    if bal == 2: e("s_nop 7\ns_nop 3\nL_x2:")
    e("s_mov_b32 exec_hi, 0")
    for j in range(4): e(f"ds_write_b128 v10, v[{80+4*j}:{80+4*j+3}] offset:{L_RD+512*j}")
    e("s_mov_b64 exec, s[92:93]")
    def lse(r, f): e(f"buffer_load_dwordx2 v[2:3], v4, {r}, s22 offen{f}")
    def opoll(r, f):
        for hf in range(2):
            for i in range(2): e(f"buffer_load_dwordx4 v[{OR_[hf]+4*i}:{OR_[hf]+4*i+3}], v0, {r}, s{20+hf} offen offset:{64*i}{f}")
        if not sent: lse(r, f)
    if lw == 2: spin("L_y", 20); wld(2)
    if lw == 1: spin("L_z", 16); wld(2)
    e(f"s_lshl_b32 s60, s3, 9\nv_lshl_add_u32 v11, v1, 3, s60")
    if not early and lw not in (1, 4) and not oe:
        e("s_waitcnt vmcnt(0)")
        for n in range(4): transpose(BO, WO, 2, n)
    if pvw and lw not in (1, 4): spin("L_z", 16, zc)
    stamp(7); (lse if sent else opoll)(*FA)
    if lw in (1, 4) or oe:
        e("s_waitcnt vmcnt(5)")
        for n in range(4): transpose(BO, WO, 2, n)
    e("v_mov_b32 v12, s32")
    def weights():
        e(f"v_max_f32_dpp v9, v{LW}, v{LW} quad_perm:[1,0,3,2] row_mask:0xf bank_mask:0xf\nv_max_f32_dpp v9, v9, v9 quad_perm:[2,3,0,1] row_mask:0xf bank_mask:0xf")
        e(f"v_sub_f32 v{LW}, v{LW}, v9\nv_exp_f32 v{LW}, v{LW}\nv_add_f32_dpp v9, v{LW}, v{LW} quad_perm:[1,0,3,2] row_mask:0xf bank_mask:0xf\nv_add_f32_dpp v9, v9, v9 quad_perm:[2,3,0,1] row_mask:0xf bank_mask:0xf\nv_rcp_f32 v9, v9\nv_mul_f32 v{LW}, v{LW}, v9")
    if pp:
        SETS = ((16, 72, 2), (96, 104, 14))
        def oset(k, r, f):
            for hf in range(2):
                for i in range(2): e(f"buffer_load_dwordx4 v[{SETS[k][hf]+4*i}:{SETS[k][hf]+4*i+3}], v0, {r}, s{20+hf} offen offset:{64*i}{f}")
            e(f"buffer_load_dwordx2 v[{SETS[k][2]}:{SETS[k][2]+1}], v4, {r}, s22 offen{f}")
        def chk(k, sfx):
            t = [SETS[k][hf]+j for hf in range(2) for j in (1, 3, 5, 7)] + [SETS[k][2]+1]
            e(f"s_waitcnt vmcnt(5)\nv_xor_b32 v9, s32, v{t[0]}")
            for x in t[1:]: e(f"v_bitop3_b32 v9, v9, v{x}, s32 bitop3:0xf6")
            e("v_cmp_ne_u32 vcc, 0, v9\ns_andn2_b64 exec, exec, vcc")
            for hf in range(2):
                for j in range(4): e(f"v_mov_b32 v{80+4*hf+j}, v{SETS[k][hf]+2*j}")
            e(f"v_mov_b32 v13, v{SETS[k][2]}\ns_mov_b64 exec, vcc\ns_cbranch_execz L_ok")
        e(f"s_waitcnt lgkmcnt(0)\ns_sleep {pp}"); oset(1, *FA)
        e("L_pp:"); chk(0, "a"); oset(0, *FA); chk(1, "b")
        e(f"s_sub_u32 s61, s61, 1\ns_cmp_lt_i32 s61, 0\ns_cbranch_scc1 L_ok\ns_and_b32 s60, s61, {msk >> 1}\ns_cbranch_scc1 L_ppa"); oset(1, *FB); e("s_branch L_pp\nL_ppa:"); oset(1, *FA)
        e("s_branch L_pp\nL_ok:\ns_mov_b64 exec, -1")
        stamp(8)
    else:
        if sent:
            poll("L_g2", lse, [3], 9, sl2, first=False, du=dual)
            e("s_cbranch_execz L_t1"); opoll(*FA); e("L_t1:")
            weights()
            poll("L_g4", opoll, otags, 9, sl2, first=False, du=dual)
        else:
            poll("L_g4", opoll, otags + [3], 9, sl2, first=False, du=dual)
        stamp(8)
        for hf in range(2):
            a = OR_[hf]
            e(f"v_mov_b32 v{a+1}, v{a+2}\nv_mov_b32 v{a+2}, v{a+4}\nv_mov_b32 v{a+3}, v{a+6}")
    e("s_cbranch_execz L_m1")
    for hf in range(2):
        for j in range(4): mfma(24+16*hf+4*j, 80+4*hf if pp else OR_[hf], BO+4*j, None)
    e("L_m1:")
    if not sent: weights()
    for hf in range(2):
        for r in range(4):
            for j in range(4):
                a = 24+16*hf+4*j+r; y = YR[hf]+j
                e(f"v_{'mul' if r == 0 else 'fmac'}_f32_dpp v{y}, v{LW}, v{a} row_newbcast:{4*hf+r} row_mask:0xf bank_mask:0xf")
        e(f"ds_write_b128 v10, v[{YR[hf]}:{YR[hf]+3}] offset:{L_R3+1024*hf}")
    e("s_waitcnt lgkmcnt(0)")
    skip("L_t2", "s_barrier")
    for w in range(4): e(f"ds_read_b64 v[{FR+4*w}:{FR+1+4*w}], v11 offset:{L_R3+2048*w}")
    for w in range(4): e(f"ds_read2st64_b32 v[{FR+2+4*w}:{FR+3+4*w}], v5 offset0:{L_RD//256+8*w} offset1:{L_RD//256+8*w+2}")
    def pa(x, y): e(f"v_pk_add_f32 v[{FR+x}:{FR+x+1}], v[{FR+x}:{FR+x+1}], v[{FR+y}:{FR+y+1}]")
    e("s_waitcnt lgkmcnt(4)"); pa(0, 4); pa(8, 12); e("s_waitcnt lgkmcnt(0)"); pa(2, 6); pa(10, 14); pa(0, 8); pa(2, 10)
    embed(FR, 12)
    e(f"buffer_store_dwordx4 v[{FR}:{FR+3}], v8, s[44:47], s14 offen sc1")
    stamp(9)
    if stamps:
        e("s_cmp_lg_u32 s3, 0\ns_cbranch_scc1 L_end"); flush(0, 10)
    e("s_endpgm")
    e("L_A:\ns_sub_u32 s3, s3, 4\ns_setprio 1")
    KR = 16; VR = 48; S = 8; PG = 16; T = 32
    e("s_lshl_b32 s33, s6, 23\ns_lshl_b32 s60, s4, 20\ns_add_u32 s33, s33, s60\ns_lshl_b32 s60, s7, 16\ns_add_u32 s33, s33, s60\ns_lshl_b32 s60, s3, 13\ns_add_u32 s33, s33, s60\ns_add_u32 s33, s33, 0xc0000\ns_add_u32 s34, s33, 4096")
    e("v_lshlrev_b32 v2, 8, v6\nv_lshl_add_u32 v2, v7, 4, v2\nv_lshlrev_b32 v3, 10, v7\nv_lshl_add_u32 v3, v6, 4, v3")
    e("s_waitcnt lgkmcnt(0)")
    srd(36, 10, 0x4000000); srd(40, 12, 0x4000000); srd(44, 30, 0x10000000); srd(48, 8, 8192); srd(56, 26, 8192)
    e(f"s_lshl_b32 s18, s4, 8\ns_add_u32 s18, s18, {WS_P}\nv_and_b32 v82, 31, v1\nv_lshlrev_b32 v82, 3, v82")
    if tlb:
        e("s_lshr_b32 s60, s5, 3\ns_lshl_b32 s62, s4, 2\ns_add_u32 s60, s60, s62\ns_cmp_lg_u32 s3, 7\ns_cbranch_scc1 L_t6")
        e("v_lshlrev_b32 v84, 20, v1\nv_add_u32 v84, 0xf0000, v84\ns_mov_b64 exec, 0xc3f\nglobal_load_dword v84, v84, s[30:31]\ns_branch L_tk")
        e("L_t6:\ns_cmp_lg_u32 s3, 6\ns_cbranch_scc1 L_t5\nv_mov_b32 v84, s33\ns_mov_b64 exec, 1\nglobal_load_dword v84, v84, s[12:13]\ns_branch L_tk")
        e("L_t5:\ns_cmp_lg_u32 s3, 5\ns_cbranch_scc1 L_t4\ns_lshl_b32 s60, s60, 17\nv_mov_b32 v84, s60\ns_mov_b64 exec, 1\nglobal_load_dword v84, v84, s[16:17]\ns_branch L_tk")
        e("L_t4:\ns_cmp_lg_u32 s3, 4\ns_cbranch_scc1 L_tk\ns_mul_i32 s60, s60, 57344\nv_mov_b32 v84, s60\nv_mov_b32 v85, 0\ns_mov_b64 exec, 1\nglobal_load_dword v84, v84, s[24:25]\nglobal_load_dword v85, v85, s[26:27]")
        e("L_tk:\ns_mov_b64 exec, -1")
    for t in range(2):
        for d in range(4):
            if 4*t+d == k0:
                e("s_barrier\ns_load_dword s32, s[30:31], 0")
            e(f"buffer_load_dwordx4 v[{KR+16*t+4*d}:{KR+16*t+4*d+3}], v2, s[36:39], s{33+t} offen offset:{64*d}{nt_kv}")
    e(f"s_lshl_b32 s60, s4, 2\ns_add_u32 s60, s60, s3\ns_lshl_b32 s20, s60, 14\ns_lshl_b32 s21, s5, 9\ns_add_u32 s20, s20, s21\ns_add_u32 s20, s20, {WS_O}")
    e(f"s_lshl_b32 s21, s60, 8\ns_lshl_b32 s60, s5, 3\ns_add_u32 s21, s21, s60\ns_add_u32 s21, s21, {WS_LSE}")
    e(f"s_add_u32 s23, s20, {DELTA}\ns_add_u32 s24, s21, {DELTA}")
    e("s_lshl_b32 s22, s6, 10\ns_lshl_b32 s60, s4, 7\ns_add_u32 s22, s22, s60\ns_lshl_b32 s60, s7, 5\ns_add_u32 s22, s22, s60")
    e(f"s_lshl_b32 s84, s4, 17\ns_lshl_b32 s60, s6, 14\ns_add_u32 s84, s84, s60\ns_lshl_b32 s60, s7, 7\ns_add_u32 s84, s84, s60\ns_add_u32 s84, s84, {WS_F}")
    for i in range(1, 4): e(f"s_add_u32 s{84+i}, s84, {4096*i}")
    e("v_and_b32 v85, 7, v1\nv_lshlrev_b32 v84, 4, v85\nv_lshlrev_b32 v85, 2, v85\nv_lshrrev_b32 v86, 3, v1\nv_lshl_add_u32 v84, v86, 9, v84\nv_mov_b32 v87, 1")
    e(f"v_and_b32 v0, 3, v1\nv_mul_u32_u24 v2, 272, v0\nv_lshl_add_u32 v2, v7, 4, v2\nv_lshlrev_b32 v0, 5, v0\ns_mov_b32 s62, {SCALE}\ns_mov_b32 s63, {LOG2E}")
    e("s_lshl_b32 s60, s3, 2\nv_add_u32 v88, s60, v0\nv_mov_b32 v83, 0\ns_getreg_b32 s19, hwreg(HW_REG_XCC_ID, 0, 4)")
    e(f"s_lshl_b32 s60, s3, 11\nv_lshl_add_u32 v89, v1, 3, s60\nv_add_u32 v89, {L_RO}, v89\nv_add_u32 v90, 1024, v89")
    e("s_lshl_b32 s60, s3, 9\nv_lshl_add_u32 v91, v1, 3, s60\ns_lshl_b32 s60, s3, 5\nv_mov_b32 v92, s60\nv_lshlrev_b32 v93, 3, v1")
    e("s_waitcnt lgkmcnt(0)"); mktag(False)
    e("s_setprio 0"); pr(5)
    for i in range(8): e(f"buffer_load_dwordx4 v[{VR+4*i}:{VR+4*i+3}], v3, s[40:43], s{33+(i>>2)} offen offset:{256*(i&3)}{nt_v}")
    e(f"buffer_load_dwordx2 v[80:81], v82, s[44:47], s18 offen{fp}")
    if wov: e("s_mov_b64 exec, 1\nds_add_u32 v83, v87 offset:12\ns_mov_b64 exec, -1")
    e("s_setprio 2")
    stamp(1)
    if dryA == 2: e("ds_read_b32 v4, v83 offset:8\ns_waitcnt lgkmcnt(0)\nv_readfirstlane_b32 s60, v4\ns_cmp_ge_u32 s60, 4\ns_cbranch_scc1 L_qk")
    if dryA: e("s_mov_b64 s[92:93], 0\ns_mov_b64 exec, 0\ns_branch " + ("L_A_dry" if dryA == 2 else "L_A_tail"))
    e("L_A_back:\ns_mov_b64 s[92:93], -1\ns_mov_b64 exec, -1")
    e("L_qw:\n" + (f"s_sleep {slq}\n" if slq else "") + "ds_read_b32 v4, v83 offset:8\ns_waitcnt lgkmcnt(0)\nv_readfirstlane_b32 s60, v4\ns_cmp_lt_u32 s60, 4\ns_cbranch_scc1 L_qw\nL_qk:")
    stamp(0)
    pr(1)
    for d in range(4): e(f"ds_read_b128 v[{96+4*d}:{99+4*d}], v2 offset:{L_QL+64*d}")
    e("s_waitcnt vmcnt(9)\nL_A_dry:")
    for d in range(4):
        e(f"s_waitcnt lgkmcnt({3-d})")
        for t in range(2): mfma(S+4*t, KR+16*t+4*d, 96+4*d, None if d == 0 else S+4*t)
    def rbs():
        for k in range(4): e(f"v_cvt_pk_bf16_f32 v{S+2*k+1}, v{S+2*k}, v{S+2*k+1}")
        for k in range(4): e(f"v_lshlrev_b32 v{S+2*k}, 16, v{S+2*k+1}\nv_and_b32 v{S+2*k+1}, 0xffff0000, v{S+2*k+1}")
    rbs()
    for k in range(4): e(f"v_pk_mul_f32 v[{S+2*k}:{S+2*k+1}], v[{S+2*k}:{S+2*k+1}], s[62:63] op_sel_hi:[1,0]")
    rbs()
    e(f"v_max3_f32 v4, v{S}, v{S+1}, v{S+2}\nv_max3_f32 v5, v{S+3}, v{S+4}, v{S+5}\nv_max3_f32 v4, v4, v{S+6}, v{S+7}\nv_max_f32 v4, v4, v5")
    red_swap("v_max_f32", 4, 5, [16, 32])
    e("v_mul_f32 v0, s63, v4")
    for k in range(8): e(f"v_fma_f32 v{S+k}, v{S+k}, s63, -v0")
    for k in range(8): e(f"v_exp_f32 v{S+k}, v{S+k}")
    for k in range(4): e(f"v_cvt_pk_bf16_f32 v{T+k}, v{S+2*k}, v{S+2*k+1}")
    e(f"v_pk_add_f32 v[4:5], v[{S}:{S+1}], v[{S+2}:{S+3}]\nv_pk_add_f32 v[6:7], v[{S+4}:{S+5}], v[{S+6}:{S+7}]\nv_pk_add_f32 v[4:5], v[4:5], v[6:7]\nv_add_f32 v4, v4, v5")
    for g in range(4):
        m = 0x000F000F << (4*g)
        e(f"s_mov_b32 s66, {m}\ns_mov_b32 s67, {m}")
        for k in range(4): e(f"v_cndmask_b32 v{PG+4*g+k}, 0, v{T+k}, s[66:67]")
    red_swap("v_add_f32", 4, 5, [16, 32])
    e(f"s_and_b64 exec, s[92:93], 15\nds_write_b32 v88, v0 offset:{L_MX}\nds_write_b32 v88, v4 offset:{L_LS}\ns_mov_b64 exec, s[92:93]")
    if lw in (2, 3, 5) or pw: e("s_mov_b64 exec, 1\nds_add_u32 v83, v87 offset:20\ns_mov_b64 exec, -1")
    stamp(2)
    for t in range(2):
        for n in (2*t, 2*t+1):
            e(f"s_waitcnt vmcnt({7-2*n})")
            if n == 3: stamp(3)
            transpose(T, VR, 4, n, fs=2, n0=2*t)
        for j in range(8): mfma16(S+4*(j&1), PG+4*(j>>1)+2*t, T+2*j, None if (j < 2 and t == 0) else S+4*(j&1))
    for h in range(4): e(f"ds_write2_b32 v{89+(h>>1)}, v{S+h}, v{S+4+h} offset0:{128*(h&1)} offset1:{128*(h&1)+1}")
    e("s_waitcnt lgkmcnt(0)\ns_and_b64 exec, s[92:93], 1\nds_add_u32 v83, v87 offset:16\ns_mov_b64 exec, s[92:93]")
    e("L_A_tail:\ns_cmp_ge_u32 s3, 4\ns_cbranch_scc1 L_A_hi")
    if pw:
        e("s_waitcnt vmcnt(0)\nv_cmp_ne_u32 vcc, s19, v80\nv_cmp_ne_u32 s[62:63], s32, v81\ns_or_b64 s[62:63], vcc, s[62:63]\nL_sw:\nds_read_b32 v4, v83 offset:20")
        e(f"ds_read_b128 v[48:51], v92 offset:{L_MX}\nds_read_b128 v[52:55], v92 offset:{L_MX+16}\nds_read_b128 v[32:35], v92 offset:{L_LS}\nds_read_b128 v[36:39], v92 offset:{L_LS+16}")
        e("s_waitcnt lgkmcnt(0)\nv_readfirstlane_b32 s60, v4\ns_cmp_lt_u32 s60, 8\ns_cbranch_scc1 L_sw")
        e("v_mov_b32 v41, s32\nv_mov_b32 v43, s32")
        e("v_max3_f32 v44, v48, v49, v50\nv_max3_f32 v45, v51, v52, v53\nv_max3_f32 v44, v44, v54, v55\nv_max_f32 v44, v44, v45")
        for w in range(8): e(f"v_sub_f32 v{48+w}, v{48+w}, v44")
        for w in range(8): e(f"v_exp_f32 v{48+w}, v{48+w}")
        e("v_mul_f32 v32, v32, v48\nv_mul_f32 v33, v33, v49")
        for w in range(2, 8): e(f"v_fmac_f32 v{32+(w&1)}, v{32+w}, v{48+w}")
        e("v_add_f32 v32, v32, v33\nv_rcp_f32 v33, v32\nv_log_f32 v42, v32\nv_add_f32 v42, v44, v42")
        e("s_mov_b64 exec, 1\nbuffer_store_dwordx2 v[42:43], v93, s[44:47], s24 offen\ns_mov_b64 exec, -1")
        for w in range(4): e(f"v_pk_mul_f32 v[{48+2*w}:{49+2*w}], v[{48+2*w}:{49+2*w}], v[32:33] op_sel:[0,1] op_sel_hi:[1,1]")
        e("L_pw:\nds_read_b32 v4, v83 offset:16")
        if pw == 2:
            for w in range(8): e(f"ds_read_b64 v[{16+2*w}:{17+2*w}], v91 offset:{L_RO+2048*w}")
        e("s_waitcnt lgkmcnt(0)\nv_readfirstlane_b32 s60, v4\ns_cmp_lt_u32 s60, 8\ns_cbranch_scc1 L_pw")
        if pw != 2:
            for w in range(8): e(f"ds_read_b64 v[{16+2*w}:{17+2*w}], v91 offset:{L_RO+2048*w}")
        for w in range(8):
            if pw != 2 and not w & 1: e(f"s_waitcnt lgkmcnt({6-w})")
            if w < 2: e(f"v_pk_mul_f32 v[{16+2*w}:{17+2*w}], v[{16+2*w}:{17+2*w}], v[48:49] op_sel:[0,{w}] op_sel_hi:[1,{w}]")
            else: e(f"v_pk_fma_f32 v[{16+2*(w&1)}:{17+2*(w&1)}], v[{16+2*w}:{17+2*w}], v[{48+(w&6)}:{49+(w&6)}], v[{16+2*(w&1)}:{17+2*(w&1)}] op_sel:[0,{w&1},0] op_sel_hi:[1,{w&1},1]")
        e("v_pk_add_f32 v[16:17], v[16:17], v[18:19]\nv_cvt_pk_bf16_f32 v40, v16, v17")
        e("buffer_store_dwordx2 v[40:41], v93, s[44:47], s23 offen" + ("\ns_mov_b64 exec, 1\nds_add_u32 v83, v87 offset:16\ns_mov_b64 exec, -1" if zc > 8 else ""))
        e("s_cmp_eq_u64 s[62:63], 0\n" + ("" if force else "s_cbranch_scc1 L_end"))
    else:
        skip("L_a3", "s_waitcnt vmcnt(0)\nv_cmp_ne_u32 vcc, s19, v80\nv_cmp_ne_u32 s[62:63], s32, v81\ns_or_b64 s[62:63], vcc, s[62:63]\nL_pw:\nds_read_b32 v4, v83 offset:16\ns_waitcnt lgkmcnt(0)\nv_readfirstlane_b32 s60, v4\ns_cmp_lt_u32 s60, 8\ns_cbranch_scc1 L_pw")
        e(f"ds_read_b128 v[48:51], v92 offset:{L_MX}\nds_read_b128 v[52:55], v92 offset:{L_MX+16}\nds_read_b128 v[32:35], v92 offset:{L_LS}\nds_read_b128 v[36:39], v92 offset:{L_LS+16}")
        for w in range(8): e(f"ds_read_b64 v[{16+2*w}:{17+2*w}], v91 offset:{L_RO+2048*w}")
        e("v_mov_b32 v41, s32\nv_mov_b32 v43, s32")
        e("s_waitcnt lgkmcnt(10)\nv_max3_f32 v44, v48, v49, v50\nv_max3_f32 v45, v51, v52, v53\nv_max3_f32 v44, v44, v54, v55\nv_max_f32 v44, v44, v45")
        for w in range(8): e(f"v_sub_f32 v{48+w}, v{48+w}, v44")
        for w in range(8): e(f"v_exp_f32 v{48+w}, v{48+w}")
        e("s_waitcnt lgkmcnt(8)\nv_mul_f32 v32, v32, v48\nv_mul_f32 v33, v33, v49")
        for w in range(2, 8): e(f"v_fmac_f32 v{32+(w&1)}, v{32+w}, v{48+w}")
        e("v_add_f32 v32, v32, v33\nv_rcp_f32 v33, v32\nv_log_f32 v42, v32\ns_waitcnt lgkmcnt(0)")
        for w in range(2): e(f"v_pk_mul_f32 v[{16+2*w}:{17+2*w}], v[{16+2*w}:{17+2*w}], v[48:49] op_sel:[0,{w}] op_sel_hi:[1,{w}]")
        for w in range(2, 8): e(f"v_pk_fma_f32 v[{16+2*(w&1)}:{17+2*(w&1)}], v[{16+2*w}:{17+2*w}], v[{48+(w&6)}:{49+(w&6)}], v[{16+2*(w&1)}:{17+2*(w&1)}] op_sel:[0,{w&1},0] op_sel_hi:[1,{w&1},1]")
        e("v_pk_add_f32 v[16:17], v[16:17], v[18:19]\nv_add_f32 v42, v44, v42\nv_pk_mul_f32 v[16:17], v[16:17], v[32:33] op_sel:[0,1] op_sel_hi:[1,1]\nv_cvt_pk_bf16_f32 v40, v16, v17")
    if not pw: e("s_cbranch_execz L_A_back")
    if dual and not pw: e(f"buffer_store_dwordx2 v[40:41], v93, s[44:47], s23 offen\ns_mov_b64 exec, 1\nbuffer_store_dwordx2 v[42:43], v93, s[44:47], s24 offen\ns_mov_b64 exec, -1\ns_cmp_eq_u64 s[62:63], 0\n" + ("" if force else "s_cbranch_scc1 L_end"))
    e(f"buffer_store_dwordx2 v[40:41], v93, s[44:47], s20 offen sc1\ns_mov_b64 exec, 1\nbuffer_store_dwordx2 v[42:43], v93, s[44:47], s21 offen sc1")
    e("s_endpgm")
    e(f"L_A_hi:\ns_cmp_lt_u32 s3, {4+(nf if f2 else 1)}\ns_cbranch_scc1 L_A_fin")
    e("s_cbranch_execz L_A_back")
    if stamps:
        e("s_cmp_lg_u32 s3, 7\ns_cbranch_scc1 L_end"); flush(10, 14)
    e("s_endpgm\nL_A_fin:"); pr(2)
    skip("L_f0", "buffer_load_dword v14, v85, s[48:51], s22 offen\ns_setprio 3\ns_barrier" + (f"\ns_sleep {d3}" if d3 else ""))
    if f2:
        for k in range(1, nf): e(f"s_cmp_lt_u32 s3, {4+k}\ns_cbranch_scc1 L_f1\ns_sleep {f2}")
        e("L_f1:")
    pr(3)
    def g3(r, f):
        for i in range(4): e(f"buffer_load_dwordx4 v[{16+4*i}:{19+4*i}], v84, s[44:47], s{84+i} offen sc1")
    poll("L_g3", g3, list(range(16, 32)), 12, sl3, emb=True)
    stamp(0)
    if f2: e("s_mov_b64 exec, 1\nds_add_rtn_u32 v4, v83, v87 offset:16\ns_mov_b64 exec, -1")
    strip(range(16, 32))
    for a, b in ((16, 20), (24, 28), (16, 24)): e(f"v_pk_add_f32 v[{a}:{a+1}], v[{a}:{a+1}], v[{b}:{b+1}]\nv_pk_add_f32 v[{a+2}:{a+3}], v[{a+2}:{a+3}], v[{b+2}:{b+3}]")
    for k in range(4): e(f"v_add_f32_dpp v{16+k}, v{16+k}, v{16+k} row_ror:8 row_mask:0xf bank_mask:0xf")
    for w in (16, 32):
        for k in range(4): e(f"v_mov_b32 v{20+k}, v{16+k}")
        for k in range(4): e(f"v_permlane{w}_swap_b32 v{16+k}, v{20+k}")
        e("v_pk_add_f32 v[18:19], v[18:19], v[22:23]\nv_pk_add_f32 v[16:17], v[16:17], v[20:21]")
    def rb2(a): e(f"v_cvt_pk_bf16_f32 v{a+1}, v{a}, v{a+1}\nv_lshlrev_b32 v{a}, 16, v{a+1}\nv_and_b32 v{a+1}, 0xffff0000, v{a+1}")
    if f2: e("s_waitcnt lgkmcnt(0)\nv_readfirstlane_b32 s60, v4\ns_cmp_lg_u32 s60, 8\ns_cbranch_scc1 L_end")
    rb2(18)
    e("v_mul_f32 v20, 0xbfb8aa3b, v18\nv_mul_f32 v21, 0xbfb8aa3b, v19\nv_exp_f32 v20, v20\nv_exp_f32 v21, v21"); rb2(16)
    e("v_add_f32 v20, 1.0, v20\nv_add_f32 v21, 1.0, v21\nv_rcp_f32 v20, v20\nv_rcp_f32 v21, v21\nv_and_b32 v15, 0xffff0000, v14\nv_lshlrev_b32 v14, 16, v14\nv_pk_mul_f32 v[18:19], v[18:19], v[20:21]"); rb2(18)
    e("v_pk_mul_f32 v[16:17], v[16:17], v[18:19]"); rb2(16)
    e("v_pk_add_f32 v[16:17], v[16:17], v[14:15]\nv_cvt_pk_bf16_f32 v16, v16, v17")
    e("s_cbranch_execz L_A_back")
    e(f"s_mov_b64 exec, 0xff\nbuffer_store_dword v16, v85, s[56:59], s22 offen{st_out}")
    e("s_cmp_lg_u32 s2, 0\ns_cbranch_scc1 L_fin\ns_mov_b64 exec, 1\nv_mov_b32 v18, s32\nv_mov_b32 v17, 0\nbuffer_store_dword v18, v17, s[44:47], 0 offen sc1\nL_fin:")
    if stamps:
        e("s_waitcnt vmcnt(0)"); stamp(1); flush(14, 16)
    if probe:
        pr(4)
        e("s_memrealtime s[74:75]\ns_waitcnt lgkmcnt(0)\ns_sub_u32 s72, s72, s70\ns_add_u32 s72, s72, s74\nL_spin:\ns_memrealtime s[74:75]\ns_waitcnt lgkmcnt(0)\ns_sub_u32 s60, s74, s72\ns_cmp_lt_i32 s60, 0\ns_cbranch_scc1 L_spin")
    e("L_end:\ns_endpgm\nL_codeend:")
    body = pad_hazards(L)
    body = [l + "   ; poll back-off: producer data cannot be there yet / between retries (early polls only add contention)" if l.strip().startswith("s_sleep") else l for l in body]
    tail = f""".section .rodata,"a"
.p2align 6
.amdhsa_kernel {NAME}_kernel
  .amdhsa_next_free_vgpr {nv}
  .amdhsa_next_free_sgpr 100
  .amdhsa_accum_offset {nv}
  .amdhsa_group_segment_fixed_size 0
  .amdhsa_kernarg_size 96
  .amdhsa_user_sgpr_count 2
  .amdhsa_user_sgpr_kernarg_segment_ptr 1
  .amdhsa_system_sgpr_workgroup_id_x 1
.end_amdhsa_kernel
"""
    return HDR + "\n".join(body) + "\n" + tail
if __name__ == "__main__":
    open(f"cdna_kernels/{NAME}.s", "w").write(gen())
    V = dict(a=dict(), b=dict(d1=12), c=dict(wov=False), d=dict(pf=0x38), e=dict(d3=24), f=dict(sl2=4, slq=1))
    for k, kw in V.items(): open(f"k_{k}.s", "w").write(gen(stamps=True, **kw))
```
